```python
import torch

def _softmax(x, axis=-1):
    return torch.softmax(x, dim=axis)

def _gelu(x):
    return torch.nn.functional.gelu(x, approximate='tanh')

def _silu(x):
    return torch.nn.functional.silu(x)

def _sigmoid(x):
    return torch.sigmoid(x)

def _layernorm(x, axis=-1, eps=1e-05):
    m = x.mean(dim=axis, keepdim=True)
    v = x.var(dim=axis, keepdim=True, unbiased=False)
    return (x - m) / torch.sqrt(v + eps)

def _scatter_add(tgt, idx, src, axis=0):
    return tgt.clone().index_add_(axis, idx, src)

def _segment_sum(src, seg, n):
    out = torch.zeros((n,) + src.shape[1:], dtype=src.dtype)
    return out.index_add_(0, seg, src)

def _pad(x, pw):
    flat = tuple((v for pair in reversed(pw) for v in pair))
    return torch.nn.functional.pad(x, flat)
kernel_name = 'adaLN_cond__grouped_kv_mqa__mixer_gmlp__prompt'

def setup_inputs():

    _w = lambda a: (lambda t: t.to(torch.bfloat16) if t.is_floating_point() else t)(torch.as_tensor(a))

    def _A_setup():
        B, S, D, H = (1, 2048, 512, 32)
        Dh = D // H
        return {'x': _w((lambda *s: torch.randn(*s, dtype=torch.bfloat16) * 0.05)(B, S, D)), 'wq': _w((lambda *s: torch.randn(*s, dtype=torch.bfloat16) * 0.05)(D, H * Dh)), 'wk': _w((lambda *s: torch.randn(*s, dtype=torch.bfloat16) * 0.05)(D, Dh)), 'wv': _w((lambda *s: torch.randn(*s, dtype=torch.bfloat16) * 0.05)(D, Dh)), 'wo': _w((lambda *s: torch.randn(*s, dtype=torch.bfloat16) * 0.05)(H * Dh, D))}
    _A_in = _A_setup()

    def _B_setup():
        B, S, D, F = (1, 2048, 512, 1792)
        Fh = F // 2
        return {'x': _w((lambda *s: torch.randn(*s, dtype=torch.bfloat16) * 0.05)(B, S, D)), 'w_in': _w((lambda *s: torch.randn(*s, dtype=torch.bfloat16) * 0.2)(D, 2 * Fh)), 'w_sp': _w(0.01 * (lambda *s: torch.randn(*s, dtype=torch.bfloat16) * 0.2)(S, S)), 'b_sp': _w(1.0 + 0.01 * (lambda *s: torch.randn(*s, dtype=torch.bfloat16) * 0.05)(S)), 'w_out': _w((lambda *s: torch.randn(*s, dtype=torch.bfloat16) * 0.05)(Fh, D))}
    _B_in = _B_setup()
    return {'A_x': _A_in['x'], 'A_wq': _A_in['wq'], 'A_wk': _A_in['wk'], 'A_wv': _A_in['wv'], 'A_wo': _A_in['wo'], 'B_x': _B_in['x'], 'B_w_in': _B_in['w_in'], 'B_w_sp': _B_in['w_sp'], 'B_b_sp': _B_in['b_sp'], 'B_w_out': _B_in['w_out'], 'c': _w((lambda *s: torch.randn(*s, dtype=torch.bfloat16) * 0.1)(1, 512) * 8.0), 'w_mod': _w((lambda *s: torch.randn(*s, dtype=torch.bfloat16) * 0.1)(512, 6 * 512) * 512 ** (-0.5) * 8.0)}

def reference(A_x, A_wq, A_wk, A_wv, A_wo, B_x, B_w_in, B_w_sp, B_b_sp, B_w_out, c, w_mod):

    def _A_ref(x, wq, wk, wv, wo):
        B, S, D = x.shape
        H = 32
        Dh = D // H
        q = (lambda x, *d: x.permute(*d))((x @ wq).reshape(B, S, H, Dh), 0, 2, 1, 3)
        k = x @ wk
        v = x @ wv
        scores = torch.einsum('bhqd,bkd->bhqk', q, k) * Dh ** (-0.5)
        p = _softmax(scores, axis=-1)
        o = torch.einsum('bhqk,bkd->bhqd', p, v)
        return (lambda x, *d: x.permute(*d))(o, 0, 2, 1, 3).reshape(B, S, H * Dh) @ wo

    def _B_ref(x, w_in, w_sp, b_sp, w_out):
        B, S, D = x.shape
        F = w_in.shape[-1]
        Fh = F // 2
        z = _gelu(torch.einsum('bsd,df->bsf', x, w_in))
        z1 = z[..., :Fh].clone()
        z2 = _layernorm(z[..., Fh:], axis=-1)
        g = torch.einsum('ts,bsf->btf', w_sp, z2) + b_sp[None, :, None]
        return torch.einsum('bsf,fd->bsd', z1 * g, w_out)
    x = A_x
    mod = (_silu(c) @ w_mod).reshape(c.shape[0], 6, 1, -1)
    sa, ca, ga, sb, cb, gb = (mod[:, 0].clone(), mod[:, 1].clone(), mod[:, 2].clone(), mod[:, 3].clone(), mod[:, 4].clone(), mod[:, 5].clone())
    h = _layernorm(x, axis=-1) * (1 + ca) + sa
    x = x + ga * _A_ref(h, A_wq, A_wk, A_wv, A_wo)
    h = _layernorm(x, axis=-1) * (1 + cb) + sb
    x = x + gb * _B_ref(h, B_w_in, B_w_sp, B_b_sp, B_w_out)
    return x
```

```python
import re, subprocess, os

TRANS = ('v_exp_f32','v_log_f32','v_rcp_f32','v_rsq_f32','v_sqrt_f32','v_sin_f32','v_cos_f32')
PROMOTE = ('v_exp_f32','v_rcp_f32','v_rsq_f32','v_sqrt_f32','v_mov_b32','v_add_f32','v_sub_f32','v_mul_f32','v_max_f32','v_min_f32',
           'v_add_u32','v_lshlrev_b32','v_and_b32','v_or_b32','v_xor_b32','v_lshrrev_b32')

def regs_of(op):
    op = op.strip()
    neg = op.lstrip('-')
    m = re.fullmatch(r'(?:abs\()?([vas])(\d+)\)?', neg)
    if m: return {(m.group(1), int(m.group(2)))}
    m = re.fullmatch(r'([vas])\[(\d+):(\d+)\]', neg)
    if m: return {(m.group(1), i) for i in range(int(m.group(2)), int(m.group(3))+1)}
    if op == 'vcc': return {('s','vcc')}
    if op == 'm0': return {('s','m0')}
    if op == 'exec': return {('s','exec')}
    return set()

class Ins:
    __slots__=('text','mn','cls','wr','rd','mA','mB','mC','mD','passes','dpp','size','wide_store','lds_dma','perm','rl','srd_rd','dotab')
    def __init__(s, text):
        s.text = text
        t = text.split(';')[0].strip()
        parts = t.split(None,1)
        mn = parts[0]; s.mn = mn
        rest = parts[1] if len(parts)>1 else ''
        ops=[]; depth=0; cur=''
        for ch in rest:
            if ch in '[(': depth+=1
            if ch in '])': depth-=1
            if ch==',' and depth==0: ops.append(cur.strip()); cur=''
            else: cur+=ch
        if cur.strip(): ops.append(cur.strip())
        mods=''
        if ops:
            last=ops[-1].split(None,1)
            ops[-1]=last[0]
            if len(last)>1: mods=last[1]
        s.wr=set(); s.rd=set(); s.mA=s.mB=s.mC=s.mD=set(); s.passes=0; s.dpp=False; s.size=None
        s.wide_store=False; s.lds_dma=False; s.perm=False; s.rl=False; s.srd_rd=set(); s.dotab=set()
        base = re.sub(r'_(e32|e64|dpp|sdwa)$','',mn)
        R=[regs_of(o) for o in ops]
        if mn.startswith('v_mfma'):
            s.cls='mfma'; s.mD,s.mA,s.mB,s.mC=R[0],R[1],R[2],R[3]
            s.wr=set(R[0]); s.rd=R[1]|R[2]|R[3]; s.passes = 8 if '32x32' in mn else 4
        elif mn.startswith('v_'):
            s.cls='trans' if base in TRANS else 'valu'
            s.dpp = mn.endswith('_dpp')
            if base.startswith('v_permlane'):
                s.perm=True; s.wr=R[0]|R[1]; s.rd=R[0]|R[1]
            elif base.startswith('v_cmp'):
                s.wr=set(R[0]); s.rd=set().union(*R[1:])
            elif base in('v_readfirstlane_b32','v_readlane_b32'):
                s.rl=True; s.wr=set(R[0]); s.rd=set().union(*R[1:])
            else:
                s.wr=set(R[0]); s.rd=set().union(*R[1:]) if len(R)>1 else set()
                if base=='v_dot2c_f32_bf16': s.dotab=set(s.rd)
                if base in('v_fmac_f32','v_dot2c_f32_bf16') or s.dpp: s.rd|=R[0]
                if base in('v_add_co_u32','v_addc_co_u32'): s.wr|=R[1]
        elif mn.startswith('ds_'):
            s.cls='ds'
            if mn.startswith('ds_read') or mn.startswith('ds_bpermute') or mn.startswith('ds_swizzle'):
                s.wr=set(R[0]); s.rd=set().union(*R[1:])
            else: s.rd=set().union(*R)
        elif mn.startswith('buffer_') or mn.startswith('global_'):
            s.cls='vmem'
            if 'load' in mn:
                if re.search(r'\blds\b',mods): s.lds_dma=True; s.rd=set().union(*R)|{('s','m0')}
                else: s.wr=set(R[0]); s.rd=set().union(*R[1:])
            else:
                s.rd=set().union(*R)
                if mn.endswith('x3') or mn.endswith('x4'): s.wide_store=True; s.mD = R[0] if mn.startswith('buffer_') else R[1]
        elif mn.startswith('s_load') or mn.startswith('s_memtime') or mn.startswith('s_memrealtime'):
            s.cls='smem'; s.wr=set(R[0]); s.rd=set().union(*R[1:]) if len(R)>1 else set()
        elif mn.startswith('s_'):
            s.cls='salu'
            if mn in('s_nop','s_waitcnt','s_barrier','s_sleep','s_endpgm','s_setprio') or mn.startswith('s_cbranch') or mn=='s_branch' or mn.startswith('s_cmp'):
                s.rd=set().union(*R) if R else set()
            else:
                s.wr=set(R[0]) if R else set(); s.rd=set().union(*R[1:]) if len(R)>1 else set()
                if 'saveexec' in mn: s.wr|={('s','exec')}
        else:
            raise ValueError('unknown instr '+text)
    def slots(s):
        if s.mn=='s_nop': return int(s.text.split()[1])+1
        return 1

def isv(r): return r[0] in 'va'
def need(p, c):
    n=0
    pv = p.cls in('valu','trans')
    if pv:
        wv={r for r in p.wr if isv(r)}; ws={r for r in p.wr if not isv(r)}
        if c.cls=='mfma' and wv & c.rd: n=max(n,2)
        if c.cls in('valu','trans'):
            if (c.perm or c.dpp) and wv & c.rd: n=max(n,2)
            if c.rl and wv & c.rd: n=max(n,1)
            if p.cls=='trans' and c.cls=='valu' and wv & c.rd: n=max(n,1)
            if ws & c.rd: n=max(n,4 if c.rl else 2)
        if c.cls=='vmem' and ws & c.rd: n=max(n,5)
        if c.cls=='salu' and ws & c.rd: n=max(n,1)
    if pv and p.mn.startswith('v_dot'):
        wv={r for r in p.wr if isv(r)}
        if c.cls in('valu','trans','ds','vmem','mfma') and wv & (c.rd|c.wr):
            same = re.sub(r'_(e32|e64)$','',c.mn)==re.sub(r'_(e32|e64)$','',p.mn)
            acc_only = same and c.mn.startswith('v_dot2c') and not (wv & c.dotab)
            if not acc_only: n=max(n,3)
    if p.cls=='mfma':
        big = 12 if p.passes==8 else 8
        if c.cls=='mfma':
            if p.mD & (c.mA|c.mB): n=max(n,big)
            if p.mD & c.mC and not (p.mD==c.mC and p.passes==c.passes): n=max(n,big-2)
            if p.mD & c.mD and not (p.mD==c.mC): n=max(n,big-2)
        elif c.cls in('valu','trans','ds','vmem'):
            if p.mD & (c.rd|c.wr): n=max(n,big)
            if c.cls in('valu','trans') and p.mC & c.wr: n=max(n,7 if p.passes==8 else 3)
    if p.cls=='salu' and ('s','m0') in p.wr and c.lds_dma: n=max(n,1)
    if p.wide_store and p.mD & c.wr: n=max(n,2)
    return n

class Gen:
    def __init__(s):
        s.items=[]
        s.vm=0; s.vm_done=0; s.lg=0; s.lg_done=0
        s.uid=0
    def I(s,text):
        for t in text.split('\n'):
            t=t.strip()
            if not t or t.startswith(';'): continue
            if t.endswith(':'): s.items.append(('label',t[:-1])); continue
            if t.startswith('.'): s.items.append(('raw',t)); continue
            ins=Ins(t); s.items.append(ins)
            if ins.cls=='vmem': s.vm+=1
            elif ins.cls=='ds': s.lg+=1
            elif ins.cls=='smem': s.lg+=2
        return s
    def U(s,text):
        s.items.append(Ins(text))
    def label(s,base):
        s.uid+=1; return f'L_{base}_{s.uid}'
    def vtok(s): return s.vm
    def ltok(s): return s.lg
    def wait(s, v=None, l=None):
        parts=[]
        if v is not None and v>s.vm_done:
            n=min(s.vm-v,63); parts.append(f'vmcnt({n})'); s.vm_done=max(s.vm_done,s.vm-n)
        if l is not None and l>s.lg_done:
            n=min(s.lg-l,15); parts.append(f'lgkmcnt({n})'); s.lg_done=max(s.lg_done,s.lg-n)
        if parts: s.items.append(Ins('s_waitcnt '+' '.join(parts)))
    def wait_all(s, v=True, l=True, force=False):
        parts=[]
        if v and (force or s.vm>s.vm_done): parts.append('vmcnt(0)'); s.vm_done=s.vm
        if l and (force or s.lg>s.lg_done): parts.append('lgkmcnt(0)'); s.lg_done=s.lg
        if parts: s.items.append(Ins('s_waitcnt '+' '.join(parts)))
    def state(s): return (s.vm,s.vm_done,s.lg,s.lg_done)
    def branches(s, conds):
        end=s.label('join'); st=s.state(); outs=[]
        for i,(c,fn) in enumerate(conds):
            s.vm,s.vm_done,s.lg,s.lg_done=st
            nxt=None
            if c is not None:
                nxt=s.label('arm'); s.I(c); s.I(f's_cbranch_scc0 {nxt}')
            fn()
            outs.append(s.state())
            if i!=len(conds)-1: s.I(f's_branch {end}')
            if nxt: s.I(nxt+':')
        if conds[-1][0] is not None: outs.append(st)
        s.I(end+':')
        s.vm=min(o[0] for o in outs); s.lg=min(o[2] for o in outs)
        s.vm_done=min(min(o[1],s.vm) if o[1]<o[0] else s.vm for o in outs) if True else 0
        s.lg_done=min(min(o[3],s.lg) if o[3]<o[2] else s.lg for o in outs)
        s.extra_vm = any(o[1]<o[0] for o in outs)
        if s.extra_vm and s.vm_done>=s.vm: s.vm_done=s.vm-1 if s.vm>0 else 0
        if any(o[3]<o[2] for o in outs) and s.lg_done>=s.lg: s.lg_done=s.lg-1

    def pad_hazards(s):
        out=[]; W=24
        for it in s.items:
            if isinstance(it,Ins):
                dist=0; req=0
                for p in reversed(out):
                    if not isinstance(p,Ins): continue
                    if p.mn=='s_branch' or p.mn=='s_endpgm': break
                    n=need(p,it)
                    if n>dist: req=max(req,n-dist)
                    dist+=p.slots()
                    if dist>=W: break
                while req>0:
                    k=min(req,16); out.append(Ins(f's_nop {k-1}')); req-=k
            out.append(it)
        s.items=out
        lab={it[1]:i for i,it in enumerate(out) if not isinstance(it,Ins) and it[0]=='label'}
        for i,it in enumerate(out):
            if isinstance(it,Ins) and (it.mn=='s_branch' or it.mn.startswith('s_cbranch')):
                tgt=it.text.split()[1]
                if tgt not in lab: continue
                before=[]; d=0
                for p in reversed(out[:i+1]):
                    if isinstance(p,Ins):
                        before.append((p,d)); d+=p.slots()
                        if d>=W: break
                d2=0
                for c in out[lab[tgt]:]:
                    if not isinstance(c,Ins): continue
                    for p,dp in before:
                        if need(p,c)>dp+d2:
                            raise RuntimeError(f'branch-edge hazard: {p.text} -> {c.text} via {it.text}')
                    d2+=c.slots()
                    if d2>=W or c.mn=='s_branch': break
    def text(s):
        o=[]
        for it in s.items:
            if isinstance(it,Ins): o.append('  '+it.text)
            elif it[0]=='label': o.append(it[1]+':')
            else: o.append(it[1])
        return '\n'.join(o)+'\n'
    def sizes(s):
        src='.amdgcn_target "amdgcn-amd-amdhsa--gfx950"\n.text\nkk:\n'+s.text()
        open('_sz.s','w').write(src)
        r=subprocess.run(['clang','-x','assembler','-target','amdgcn-amd-amdhsa','-mcpu=gfx950','-c','_sz.s','-o','_sz.o'],capture_output=True,text=True)
        if r.returncode: print(r.stderr[:4000]); raise SystemExit(1)
        d=subprocess.run(['llvm-objdump','-d','--mcpu=gfx950','_sz.o'],capture_output=True,text=True).stdout
        sz=[]
        for l in d.split('\n'):
            m=re.search(r'// ([0-9A-F]{12}): ((?:[0-9A-F]{8} ?)+)',l)
            if m: sz.append(len(m.group(2).split())*4)
        ins=[it for it in s.items if isinstance(it,Ins)]
        assert len(ins)==len(sz),(len(ins),len(sz))
        for i,z in zip(ins,sz): i.size=z
    def align8(s):
        s.sizes()
        off=0; cand=None; fixed=0; left=0
        for it in s.items:
            if not isinstance(it,Ins): continue
            if it.size==4:
                base=re.sub(r'_e32$','',it.mn)
                lit = re.search(r'0x[0-9a-f]+|\b\d{3,}\b', it.text.split(None,1)[1] if ' ' in it.text else '')
                if base in PROMOTE and not lit: cand=it
            elif off%8==4:
                if cand is not None:
                    cand.text=cand.text.replace(cand.mn, re.sub(r'_e32$','',cand.mn)+'_e64',1); cand.mn=cand.text.split()[0]; cand.size=8
                    off+=4; fixed+=1
                else: left+=1
                cand=None
            else: cand=None
            off+=it.size
        return fixed,left,off

class Regs:
    def __init__(s,n=256): s.free=[True]*n
    def alloc(s,n=1,align=None):
        a=align or (4 if n>=4 else (2 if n>=2 else 1))
        for b in range(0,len(s.free)-n+1,a):
            if all(s.free[b:b+n]):
                for i in range(b,b+n): s.free[i]=False
                return b
        raise RuntimeError(f'out of registers ({n})')
    def rel(s,b,n=1):
        for i in range(b,b+n):
            assert not s.free[i],('double free',i)
            s.free[i]=True
    def used(s): return len(s.free)-sum(s.free)
```

```python
import sys, os, struct
sys.path.insert(0, os.path.dirname(os.path.abspath(__file__)))
from asmlib import *

NAME = 'adaLN_cond__grouped_kv_mqa__mixer_gmlp__prompt'

EPOCH = 0x0
XCCW = 0x1000
KVG = 0x9000
KVL = 0xA000
HF = 0xB000
OF = 0xC000
H2F = 0xD000
YF = 0xE000
ZF = 0x10000
MOD2 = 0x14000
MODA = 0x20000
MODB = 0x30000
ST1 = 0x40000
ST2 = 0x80000
KV = 0xC0000
H = 0x100000
O = 0x300000
H2 = 0x500000
Z2N = 0x700000
Y = 0xB00000
DBG = 0xF00000
WSSZ = 0x1000000
REC = 2080
HALF = 32 * REC

L_WQ = 0
L_WK = 65536
L_WV = 81920
L_MOD = 98304
L_MOD2 = 133120
L_HROW = 141312
L_QX = 149632
L_SILU = 157824
L_PART = 158848
L_PART2 = 159360
L_STAT = 159616
L_MODV = 161792
R_TOP = 133120
R_H0A = 0
R_H0B = 33280
R_H1A = 66560
R_H1B = 99840
L_RED = 114688
LDS_BYTES = 163840

S_X, S_WQ, S_WK, S_WV, S_WO, S_WIN, S_WSP, S_BSP, S_WOUT, S_C, S_WMOD, S_OUT, S_WS = [4 + 4 * i for i in range(13)]
sW, sXs, sR, sJ, sG, sE, sMODE, sLIM, sCNT = 56, 57, 58, 59, 60, 61, 62, 63, 64
sT0, sT1, sT2, sT3 = 65, 66, 67, 68
sONES = 69
sM0, sM1 = 70, 72
sROW = 74
sFRG = 75
sSX = 76
sKM = 84
sA, sB = 85, 86
sSTMP = 96


def srd(n): return f's[{n}:{n+3}]'
def vr(b, n=1): return f'v{b}' if n == 1 else f'v[{b}:{b+n-1}]'
def ar(b, n=1): return f'a{b}' if n == 1 else f'a[{b}:{b+n-1}]'
def f2u(x): return struct.unpack('<I', struct.pack('<f', x))[0]
def fl(x): return hex(f2u(x))

LOG2E = 1.4426950408889634
BOUND_T = 48.0
SPIN = 200000


class K:
    def __init__(s, stop=None, stamps=False, force_slow=False, force_mode=None):
        s.g = Gen(); s.R = Regs(256); s.stop = stop; s.stamps = stamps
        s.force_slow = force_slow; s.force_mode = force_mode
        s.nst = 0; s.names = []

    def I(s, t): s.g.I(t)

    def stamp(s, name, hard=False):
        if not s.stamps: return
        i = s.nst; s.nst += 1; s.names.append(name)
        if i > 0:
            s.g.U(f'v_writelane_b32 v{s.vST}, s{sSTMP + 2 * ((i - 1) & 1)}, {i - 1}')
        s.g.U(f's_memtime s[{sSTMP + 2 * (i & 1)}:{sSTMP + 2 * (i & 1) + 1}]')
        if hard: s.g.U('s_waitcnt lgkmcnt(0)')

    def mf16(s, d, a, b, c=None):
        s.I(f'v_mfma_f32_16x16x32_bf16 {d}, {a}, {b}, {c if c is not None else d}')

    def mf32(s, d, a, b, c=None):
        s.I(f'v_mfma_f32_32x32x16_bf16 {d}, {a}, {b}, {c if c is not None else d}')

    def setexec(s, mask):
        if mask == -1: s.I('s_mov_b64 exec, -1'); return
        lo, hi = mask & 0xffffffff, mask >> 32
        if hi == 0 and lo <= 64: s.I(f's_mov_b64 exec, {lo}')
        elif hi == 0 and lo < 0x80000000: s.I(f's_mov_b64 exec, {hex(lo)}')
        else: s.I(f's_mov_b32 exec_lo, {hex(lo)}\ns_mov_b32 exec_hi, {hex(hi)}')

    def local_store(s, fn):
        s.g.branches([(f's_cmp_eq_u32 s{sMODE}, 1', lambda: fn('')), (None, lambda: fn('sc1'))])

    def poll(s, loads, check, mask=None):
        g = s.g; L = g.label('poll'); D = g.label('pdone')
        if mask is not None: s.setexec(mask)
        s.I(f's_mov_b32 s{sCNT}, s{sLIM}')
        s.I(L + ':')
        loads()
        g.wait_all(v=True, l=False, force=True)
        check()
        s.I(f's_cbranch_vccz {D}\ns_sub_u32 s{sCNT}, s{sCNT}, 1\ns_cmp_lg_u32 s{sCNT}, 0\ns_cbranch_scc1 {L}\ns_mov_b32 s{sLIM}, 1')
        s.I(D + ':')
        if mask is not None: s.setexec(-1)

    def flag_poll(s, vaddr, n, soff='0'):
        t = s.R.alloc()
        s.poll(lambda: s.I(f'buffer_load_dword v{t}, v{vaddr}, {srd(S_WS)}, {soff} offen sc1'),
               lambda: s.I(f'v_cmp_ne_u32 vcc, s{sE}, v{t}'), mask=(1 << n) - 1)
        s.R.rel(t)

    def group_flag(s, base):
        g = s.g; R = s.R
        g.wait_all(v=True, l=True)
        s.I('s_barrier')
        a = R.alloc(); e = R.alloc()
        s.I(f's_lshl_b32 s{sT0}, s{sG}, 7\ns_add_u32 s{sT0}, s{sT0}, {base}\ns_lshl_b32 s{sT1}, s{sJ}, 2\ns_add_u32 s{sT1}, s{sT1}, s{sT0}')
        s.I(f'v_mov_b32 v{e}, s{sE}\nv_mov_b32 v{a}, s{sT1}')

        def raise_():
            s.setexec(1)
            s.local_store(lambda f: s.I(f'buffer_store_dword v{e}, v{a}, {srd(S_WS)}, 0 offen {f}'))
            s.setexec(-1)
        g.branches([(f's_cmp_eq_u32 s{sW}, 0', raise_)])
        s.I(f'v_lshlrev_b32 v{a}, 2, v{s.vL}')
        s.flag_poll(a, 8, f's{sT0}')
        R.rel(a); R.rel(e)

    def xsum(s, v, op='v_add_f32', do16=True, do32=True):
        t = s.R.alloc()
        if do16:
            s.I(f'v_mov_b32 v{t}, v{v}\nv_permlane16_swap_b32 v{v}, v{t}\n{op} v{v}, v{v}, v{t}')
        if do32:
            s.I(f'v_mov_b32 v{t}, v{v}\nv_permlane32_swap_b32 v{v}, v{t}\n{op} v{v}, v{v}, v{t}')
        s.R.rel(t)

    def xsum2(s, a, b):
        t = s.R.alloc(); u = s.R.alloc()
        for p in ('16', '32'):
            s.I(f'v_mov_b32 v{t}, v{a}\nv_mov_b32 v{u}, v{b}\nv_permlane{p}_swap_b32 v{a}, v{t}\nv_permlane{p}_swap_b32 v{b}, v{u}\n'
                f'v_add_f32 v{a}, v{a}, v{t}\nv_add_f32 v{b}, v{b}, v{u}')
        s.R.rel(t); s.R.rel(u)

    def rowred(s, regs, op, steps=4):
        pats = ['quad_perm:[1,0,3,2]', 'quad_perm:[2,3,0,1]', 'row_half_mirror', 'row_mirror'][:steps]
        for p in pats:
            for v in regs:
                s.I(f'{op}_dpp v{v}, v{v}, v{v} {p} row_mask:0xf bank_mask:0xf')

    def meanstd(s, sm, sq, n):
        t = s.R.alloc()
        s.I(f'v_mul_f32 v{sm}, {fl(1.0 / n)}, v{sm}\nv_mul_f32 v{t}, v{sm}, v{sm}\ns_mov_b32 s{sT0}, {fl(1.0 / n)}\n'
            f'v_fma_f32 v{sq}, v{sq}, s{sT0}, -v{t}\nv_max_f32 v{sq}, 0, v{sq}\nv_add_f32 v{sq}, {fl(1e-5)}, v{sq}\n'
            f'v_rsq_f32 v{sq}, v{sq}\nv_mul_f32_e64 v{sm}, -v{sm}, v{sq}')
        s.R.rel(t)

    def gemm(s, jobs, look=7, wn=4, hooks=None):
        g = s.g; R = s.R; hooks = hooks or {}
        ring = R.alloc(4 * (look + 1)); toks = []

        def issue(i):
            j = jobs[i]; b = ring + 4 * (i % (look + 1))
            s.I(f'ds_read_b64_tr_b16 {vr(b, 2)}, v{j["addr"]} offset:{j["o1"]}\nds_read_b64_tr_b16 {vr(b + 2, 2)}, v{j["addr"]} offset:{j["o2"]}')
            toks.append(g.ltok())
        n = len(jobs); nxt = 0
        for i in range(n):
            if i in hooks: hooks[i]()
            lim = min([h for h in hooks if h > i and getattr(hooks[h], 'fence', False)] + [n])
            while nxt < min(i + look, lim) or nxt <= i:
                issue(nxt); nxt += 1
            j = jobs[i]
            upto = min(i + wn - 1, nxt - 1)
            if toks[i] > g.lg_done: g.wait(l=toks[upto], v=j.get('vtok'))
            elif j.get('vtok') is not None: g.wait(v=j['vtok'])
            b = vr(ring + 4 * (i % (look + 1)), 4)
            acc = vr(j['acc'], 4)
            a_, b_ = (b, j['act']) if j['wfirst'] else (j['act'], b)
            s.mf16(acc, a_, b_, '0' if j['first'] else None)
        R.rel(ring, 4 * (look + 1))

    def gelu(s, base, n):
        R = s.R
        k1 = -2.0 * 0.7978845608028654 * LOG2E
        k3 = k1 * 0.044715
        s.I(f's_mov_b32 s{sT0}, {fl(k3)}\ns_mov_b32 s{sT1}, {fl(k3)}\ns_mov_b32 s{sT2}, {fl(k1)}')
        kk = R.alloc(2); s.I(f'v_mov_b32 v{kk}, s{sT2}\nv_mov_b32 v{kk + 1}, s{sT2}')
        t = R.alloc(4)
        assert sT0 % 2 == 1
        s.I(f's_mov_b32 s{sM0}, {fl(k3)}\ns_mov_b32 s{sM0 + 1}, {fl(k3)}')
        for i in range(0, n, 4):
            z0, z1 = vr(base + i, 2), vr(base + i + 2, 2); t0, t1 = vr(t, 2), vr(t + 2, 2)
            s.I(f'v_pk_mul_f32 {t0}, {z0}, {z0}\nv_pk_mul_f32 {t1}, {z1}, {z1}\n'
                f'v_pk_fma_f32 {t0}, {t0}, s[{sM0}:{sM0 + 1}], {vr(kk, 2)}\nv_pk_fma_f32 {t1}, {t1}, s[{sM0}:{sM0 + 1}], {vr(kk, 2)}\n'
                f'v_pk_mul_f32 {t0}, {t0}, {z0}\nv_pk_mul_f32 {t1}, {t1}, {z1}')
            for q in range(4): s.I(f'v_exp_f32 v{t + q}, v{t + q}')
            s.I(f'v_pk_add_f32 {t0}, {t0}, 1.0 op_sel_hi:[1,0]\nv_pk_add_f32 {t1}, {t1}, 1.0 op_sel_hi:[1,0]')
            for q in range(4): s.I(f'v_rcp_f32 v{t + q}, v{t + q}')
            s.I(f'v_pk_mul_f32 {z0}, {z0}, {t0}\nv_pk_mul_f32 {z1}, {z1}, {t1}')
        R.rel(t, 4); R.rel(kk, 2)

    def stats_exchange(s, base, sm, sq, n):
        g = s.g; R = s.R
        s.xsum2(sm, sq)
        gr = R.alloc(4); a = R.alloc(); q = R.alloc(8)
        s.I(f'v_mov_b32 v{gr}, v{sm}\nv_mov_b32 v{gr + 1}, v{sq}\nv_mov_b32 v{gr + 2}, s{sE}\nv_mov_b32 v{gr + 3}, s{sE}')
        s.I(f's_lshl_b32 s{sT0}, s{sG}, 13\ns_lshl_b32 s{sT1}, s{sW}, 8\ns_add_u32 s{sT0}, s{sT0}, s{sT1}\ns_add_u32 s{sA}, s{sT0}, {base}\n'
            f's_lshl_b32 s{sT1}, s{sJ}, 10\ns_add_u32 s{sB}, s{sT1}, s{sA}')
        s.setexec(0xffff)
        s.local_store(lambda f: s.I(f'buffer_store_dwordx4 {vr(gr, 4)}, v{s.vL16}, {srd(S_WS)}, s{sB} offen {f}'))
        s.setexec(-1)
        s.I(f'v_lshlrev_b32 v{a}, 11, v{s.vGQ}\nv_lshl_add_u32 v{a}, v{s.vL15}, 4, v{a}')

        def loads():
            s.I(f'buffer_load_dwordx4 {vr(q, 4)}, v{a}, {srd(S_WS)}, s{sA} offen sc1\n'
                f'buffer_load_dwordx4 {vr(q + 4, 4)}, v{a}, {srd(S_WS)}, s{sA} offen offset:1024 sc1')

        def check():
            s.I(f'v_xor_b32 v{q + 2}, s{sE}, v{q + 2}\nv_xor_b32 v{q + 6}, s{sE}, v{q + 6}\nv_or_b32 v{q + 2}, v{q + 2}, v{q + 6}\nv_cmp_ne_u32 vcc, 0, v{q + 2}')
        s.poll(loads, check)
        s.I(f'v_add_f32 v{sm}, v{q}, v{q + 4}\nv_add_f32 v{sq}, v{q + 1}, v{q + 5}')
        s.xsum2(sm, sq)
        s.meanstd(sm, sq, n)
        R.rel(gr, 4); R.rel(a); R.rel(q, 8)

    def dma(s, vaddr, sd, soff, m0, off=0, fl_=''):
        if m0 is not None: s.I(f's_mov_b32 m0, {m0}' if isinstance(m0, int) else m0)
        o = f' offset:{off}' if off else ''
        s.I(f'buffer_load_dwordx4 v{vaddr}, {srd(sd)}, {soff} offen{o} {fl_} lds')

    def img_dma(s, sd, lds, chunk, colreg=None):
        c, sreg = chunk
        s.I(f's_add_u32 s{sT0}, s{sreg}, {c}\ns_lshl_b32 s{sT1}, s{sT0}, 10\ns_add_u32 m0, s{sT1}, {lds}\n'
            f's_lshl_b32 s{sT0}, s{sT0}, 13\ns_add_u32 s{sT0}, s{sT0}, s{s.sJ128}')
        s.dma(s.vSWZ, sd, f's{sT0}', None)

    def win_round(s, part, rd, region, qs=range(7)):
        out = []
        for q in qs:
            def f(q=q):
                col = 1792 if part == 2 else 0
                s.I(f's_add_u32 s{sT0}, s{s.sWIN}, {rd * 4 * 32 * 3584 + col}\ns_add_u32 m0, s{s.sW7}, {region + 1024 * q}')
                s.dma(s.vWIN + q, S_WIN, f's{sT0}', None)
            out.append(f)
        return out

    def finish(s):
        g = s.g
        if s.stamps:
            s.stamp('end')
            i = s.nst
            s.I('s_waitcnt lgkmcnt(0)')
            g.U(f'v_writelane_b32 v{s.vST}, s{sSTMP + 2 * ((i - 1) & 1)}, {i - 1}')
            g.U(f's_memrealtime s[{sSTMP}:{sSTMP + 1}]')
            s.I('s_waitcnt lgkmcnt(0)')
            g.U(f'v_writelane_b32 v{s.vST}, s{sSTMP}, 63')
            a = s.R.alloc()
            s.I(f's_lshl_b32 s{sT0}, s2, 2\ns_add_u32 s{sT0}, s{sT0}, s{sW}\ns_lshl_b32 s{sT0}, s{sT0}, 8\ns_add_u32 s{sT0}, s{sT0}, {DBG}\n'
                f'v_lshlrev_b32 v{a}, 2, v{s.vL}\nbuffer_store_dword v{s.vST}, v{a}, {srd(S_WS)}, s{sT0} offen')
        s.I('L_end:\ns_endpgm\nL_code_end:')

    def build(s):
        g = s.g; R = s.R; I = s.I
        v0 = R.alloc()
        s.vL, s.vL15, s.vGQ, s.vL16, s.vSWZ = [R.alloc() for _ in range(5)]
        vL, vL15, vGQ, vL16, vSWZ = s.vL, s.vL15, s.vGQ, s.vL16, s.vSWZ
        I('L_code_start:\ns_cmp_ge_u32 s2, 256\ns_cbranch_scc1 L_end')
        if s.stamps:
            s.vST = R.alloc()
            g.U(f's_memrealtime s[{sSTMP + 2}:{sSTMP + 3}]')
            I(f'v_mov_b32 v{s.vST}, 0\ns_waitcnt lgkmcnt(0)')
            g.U(f'v_writelane_b32 v{s.vST}, s{sSTMP + 2}, 62')
            s.stamp('start')
        for sd, off in ((S_WMOD, 88), (S_C, 80), (S_X, 0), (S_WS, 112), (S_WK, 16), (S_WV, 24), (S_WQ, 8)):
            I(f's_load_dwordx2 s[{sd}:{sd + 1}], s[0:1], {off}')
        sizes = {S_X: 2097152, S_WQ: 524288, S_WK: 16384, S_WV: 16384, S_WO: 524288, S_WIN: 1835008, S_WSP: 8388608, S_BSP: 4096,
                 S_WOUT: 917504, S_C: 1024, S_WMOD: 3145728, S_OUT: 2097152, S_WS: WSSZ}
        t0, t1, t2 = R.alloc(), R.alloc(), R.alloc()
        I(f'v_lshrrev_b32 v{t0}, 6, v0\nv_and_b32 v{vL}, 63, v0\nv_readfirstlane_b32 s{sW}, v{t0}\n'
          f's_and_b32 s{sXs}, s2, 7\ns_lshr_b32 s{sR}, s2, 3\ns_and_b32 s{sJ}, s{sR}, 7\ns_lshr_b32 s{sT0}, s{sR}, 3\n'
          f's_lshl_b32 s{sG}, s{sXs}, 2\ns_add_u32 s{sG}, s{sG}, s{sT0}')
        def codepf():
            I(f's_getpc_b64 s[{sM0}:{sM0 + 1}]\nL_pc:\ns_lshl_b32 s{sT0}, s{sR}, 13\nv_lshlrev_b32 v{t1}, 7, v{vL}\nv_add_u32 v{t1}, s{sT0}, v{t1}\n'
              f'v_min_u32 v{t1}, L_code_end-L_pc-4, v{t1}\nglobal_load_dword v{t2}, v{t1}, s[{sM0}:{sM0 + 1}]')
        g.branches([(f's_lshr_b32 s{sT1}, s{sR}, 3\ns_sub_u32 s{sT2}, 3, s{sW}\ns_or_b32 s{sT1}, s{sT1}, s{sT2}\ns_cmp_eq_u32 s{sT1}, 0', codepf)])
        for sd, z in sizes.items():
            I(f's_mov_b32 s{sd + 2}, {hex(z)}\ns_mov_b32 s{sd + 3}, 0x20000')
        I(f's_mov_b32 s{sLIM}, {SPIN}\ns_mov_b32 s{sONES}, 0x3f803f80')
        I(f'v_and_b32 v{vL15}, 15, v{vL}\nv_lshrrev_b32 v{vGQ}, 4, v{vL}\nv_lshlrev_b32 v{vL16}, 4, v{vL}')
        tq = R.alloc()
        I(f'v_lshlrev_b32 v{t0}, 1, v{vGQ}\nv_and_b32 v{tq}, 7, v{vL}\nv_xor_b32 v{t0}, v{t0}, v{tq}\nv_lshlrev_b32 v{t0}, 4, v{t0}\n'
          f'v_lshrrev_b32 v{tq}, 3, v{vL}\nv_lshl_add_u32 v{vSWZ}, v{tq}, 10, v{t0}')
        vT4 = R.alloc(); vMA = R.alloc(); vXS = R.alloc(); vM2 = R.alloc()
        I(f'v_lshlrev_b32 v{vT4}, 2, v0')
        I(f'v_lshrrev_b32 v{t0}, 2, v{vL}\nv_mul_u32_u24 v{t0}, 6144, v{t0}\nv_and_b32 v{tq}, 3, v{vL}\nv_lshl_add_u32 v{vMA}, v{tq}, 4, v{t0}')
        I(f'v_lshrrev_b32 v{t0}, 5, v{vL}\nv_lshlrev_b32 v{t0}, 10, v{t0}\nv_and_b32 v{tq}, 31, v{vL}\nv_lshl_add_u32 v{vXS}, v{tq}, 5, v{t0}')
        I(f'v_mul_u32_u24 v{vM2}, 6144, v{vL}')
        R.rel(tq)
        s.sJ128 = 87; s.sWIN = 88; s.sW7 = 89; sR8 = 90; sWQC = 91; sKVO = 92; sREC = 93
        I(f's_lshl_b32 s{s.sJ128}, s{sJ}, 7\n'
          f's_lshl_b32 s{sR8}, s{sG}, 6\ns_lshl_b32 s{sT0}, s{sJ}, 3\ns_add_u32 s{sR8}, s{sR8}, s{sT0}\ns_lshl_b32 s{sR8}, s{sR8}, 10\n'
          f's_mul_i32 s{sA}, s{sW}, {128 * 6144}\ns_lshl_b32 s{sT0}, s{sR}, 6\ns_add_u32 s{sB}, s{sA}, s{sT0}\n'
          f's_lshl_b32 s{sT3}, s{sW}, 13\ns_add_u32 s{sT3}, s{sT3}, {L_MOD}')
        g.wait_all(v=False, l=True)
        g.U(f's_load_dword s{sE}, s[{S_WS}:{S_WS + 1}], {EPOCH}')
        s.stamp('karg', True)
        vC = R.alloc()
        I(f'buffer_load_dword v{vC}, v{vT4}, {srd(S_C)}, 0 offen'); tC = g.vtok()
        for i in range(8):
            I(f's_add_u32 m0, s{sT3}, {i * 1024}\ns_add_u32 s{sT0}, s{sB}, {i * 16 * 6144}')
            s.dma(vMA, S_WMOD, f's{sT0}', None)
        tMOD = g.vtok()
        XS = R.alloc(8); XC = R.alloc(8)
        I(f's_lshl_b32 s{sT0}, s{sW}, 11\ns_add_u32 s{sT0}, s{sT0}, s{sR8}\ns_add_u32 s{sT1}, s{sR8}, 4096')
        I(f'buffer_load_dwordx4 {vr(XS, 4)}, v{vXS}, {srd(S_X)}, s{sT0} offen\nbuffer_load_dwordx4 {vr(XS + 4, 4)}, v{vXS}, {srd(S_X)}, s{sT0} offen offset:16')
        for i in range(8):
            I(f'buffer_load_dword v{XC + i}, v{vT4}, {srd(S_X)}, s{sR8 if i < 4 else sT1} offen offset:{(i & 3) * 1024}')
        tX = g.vtok()
        s.stamp('iss1', True)
        for sd, off in ((S_WO, 32), (S_WIN, 48), (S_WSP, 56), (S_BSP, 64), (S_WOUT, 72), (S_OUT, 96)):
            g.U(f's_load_dwordx2 s[{sd}:{sd + 1}], s[0:1], {off}')

        def wkv(sd, lds, c0):
            def f():
                for i in range(16):
                    if i % 4 == 0: I(f's_mov_b32 m0, {lds + i * 1024}\ns_mov_b32 s{sT0}, {i * 1024}')
                    s.dma(vL16, sd, f's{sT0}', None, off=(i % 4) * 1024)
                I(f's_mov_b32 s{sWQC}, {c0}')
                for i in range(8): s.img_dma(S_WQ, L_WQ, (i, sWQC))
            return f

        def wq24():
            I(f's_mul_i32 s{sWQC}, s{sW}, 24\ns_sub_u32 s{sWQC}, s{sWQC}, 32')
            for i in range(24): s.img_dma(S_WQ, L_WQ, (i, sWQC))
        g.branches([(f's_cmp_eq_u32 s{sW}, 0', wkv(S_WK, L_WK, 0)), (f's_cmp_eq_u32 s{sW}, 1', wkv(S_WV, L_WV, 8)), (None, wq24)])
        I(f's_lshl_b32 s{sT0}, s{sXs}, 9\ns_lshl_b32 s{sT1}, s{sR}, 4\ns_add_u32 s{sT0}, s{sT0}, s{sT1}\ns_add_u32 s{sT0}, s{sT0}, s{sA}\ns_add_u32 s{sT0}, s{sT0}, 2048\n'
          f's_lshl_b32 s{sT1}, s{sW}, 11\ns_add_u32 m0, s{sT1}, {L_MOD2}')
        s.dma(vM2, S_WMOD, f's{sT0}', None)
        I(f's_add_u32 s{sT0}, s{sT0}, {64 * 6144}\ns_add_u32 m0, m0, 1024')
        s.dma(vM2, S_WMOD, f's{sT0}', None)
        for r_ in (vMA, vXS, vM2): R.rel(r_)
        s.stamp('iss2', True)
        g.wait(v=tC)
        s.stamp('cgot', True)
        a, b, ea, eb = R.alloc(), R.alloc(), R.alloc(), R.alloc()
        I(f'v_lshlrev_b32 v{a}, 16, v{vC}\nv_and_b32 v{b}, 0xffff0000, v{vC}\nv_mul_f32 v{ea}, {fl(-LOG2E)}, v{a}\nv_mul_f32 v{eb}, {fl(-LOG2E)}, v{b}\n'
          f'v_exp_f32 v{ea}, v{ea}\nv_exp_f32 v{eb}, v{eb}\nv_add_f32 v{ea}, 1.0, v{ea}\nv_add_f32 v{eb}, 1.0, v{eb}\n'
          f'v_rcp_f32 v{ea}, v{ea}\nv_rcp_f32 v{eb}, v{eb}\nv_mul_f32 v{a}, v{a}, v{ea}\nv_mul_f32 v{b}, v{b}, v{eb}\nv_cvt_pk_bf16_f32 v{a}, v{a}, v{b}\n'
          f'v_add_u32 v{b}, {L_SILU}, v{vT4}')
        I('s_waitcnt lgkmcnt(0)')
        I(f'ds_write_b32 v{b}, v{a}')
        I(f's_mul_i32 s{sE}, s{sE}, 0x9e3779b1\ns_add_u32 s{sE}, s{sE}, 0x7f4a7c15\ns_getreg_b32 s{sT0}, hwreg(HW_REG_XCC_ID, 0, 4)\n'
          f's_and_b32 s{sMODE}, s{sE}, 0xfffffff0\ns_or_b32 s{sMODE}, s{sMODE}, s{sT0}')

        def xpub():
            I(f's_lshl_b32 s{sT0}, s{sXs}, 12\ns_lshl_b32 s{sT1}, s{sR}, 7\ns_add_u32 s{sT0}, s{sT0}, s{sT1}\ns_add_u32 s{sT0}, s{sT0}, {XCCW}\n'
              f'v_mov_b32 v{ea}, s{sMODE}\nv_mov_b32 v{eb}, 0\ns_mov_b64 exec, 1\nbuffer_store_dword v{ea}, v{eb}, {srd(S_WS)}, s{sT0} offen sc1\ns_mov_b64 exec, -1')
        g.branches([(f's_cmp_eq_u32 s{sW}, 2', xpub)])
        g.wait_all(v=False, l=True)
        I('s_barrier')
        for r_ in (a, b, ea, eb, vC): R.rel(r_)
        SF = R.alloc(16); vA = R.alloc(); vB = R.alloc()
        I(f's_lshl_b32 s{sT0}, s{sW}, 8\ns_add_u32 s{sT0}, s{sT0}, {L_SILU}\nv_lshl_add_u32 v{vA}, v{vGQ}, 3, s{sT0}')
        for k in range(4): I(f'ds_read2_b64 {vr(SF + 4 * k, 4)}, v{vA} offset0:{8 * k} offset1:{8 * k + 4}')
        vR4 = R.alloc(); vC8 = R.alloc()
        I(f'v_lshrrev_b32 v{vR4}, 2, v{vL}\nv_and_b32 v{vC8}, 3, v{vL}\nv_lshlrev_b32 v{vC8}, 3, v{vC8}')
        I(f'v_lshl_add_u32 v{vB}, v{vR4}, 6, v{vC8}\nv_add_u32 v{vB}, s{sT3}, v{vB}')
        AC = R.alloc(8)
        s.stamp('bar1', True)
        g.wait(v=tMOD)
        s.stamp('modimg')
        jobs = [dict(addr=vB, o1=k * 2048 + 32 * nt, o2=k * 2048 + 1024 + 32 * nt, act=vr(SF + 4 * k, 4), acc=AC + 4 * nt, first=(k == 0), wfirst=False)
                for k in range(4) for nt in range(2)]
        s.gemm(jobs, look=5, wn=2)
        I(f's_mov_b32 s{sM0}, 0xffff0000\ns_mov_b32 s{sM0 + 1}, 0\ns_lshl_b32 s{sT0}, s{sW}, 2\ns_add_u32 s{sT0}, s{sT0}, {L_PART}\nv_add_u32 v{vA}, s{sT0}, v{vL16}')
        I(f'v_cndmask_b32 v{AC}, v{AC}, v{AC + 4}, s[{sM0}:{sM0 + 1}]')
        s.setexec(0xffffffff)
        I(f'ds_write_b32 v{vA}, v{AC}')
        s.setexec(-1)
        g.wait_all(v=False, l=True)
        I('s_barrier')

        def publish_sum(part, nl, one_cond, stores):
            q = AC
            I(f'v_add_u32 v{vA}, {part}, v{vL16}')
            s.setexec((1 << nl) - 1)
            I(f'ds_read_b128 {vr(q, 4)}, v{vA}')
            I(one_cond + f'\ns_cselect_b32 s{sT2}, 1.0, 0')
            g.wait_all(v=False, l=True)
            I(f'v_add_f32 v{q}, v{q}, v{q + 1}\nv_add_f32 v{q + 2}, v{q + 2}, v{q + 3}\nv_add_f32 v{q}, v{q}, v{q + 2}\n'
              f'v_cvt_pk_bf16_f32 v{q}, v{q}, v{q}\nv_and_b32 v{q}, 0xffff0000, v{q}\nv_add_f32 v{q}, s{sT2}, v{q}\n'
              f'v_cvt_pk_bf16_f32 v{q}, v{q}, v{q}\nv_and_b32 v{q}, 0xffff0000, v{q}\nv_mov_b32 v{q + 1}, s{sE}\nv_lshlrev_b32 v{vA}, 3, v{vL}')
            stores(q)
            s.setexec(-1)

        def modpub():
            I(f's_lshl_b32 s{sT0}, s{sXs}, 13\ns_lshl_b32 s{sT1}, s{sR}, 8\ns_add_u32 s{sT0}, s{sT0}, s{sT1}\ns_add_u32 s{sT1}, s{sT0}, {MODB}\ns_add_u32 s{sT0}, s{sT0}, {MODA}')
            publish_sum(L_PART, 32, f's_cmp_ge_u32 s{sR}, 16',
                        lambda q: I(f'buffer_store_dwordx2 {vr(q, 2)}, v{vA}, {srd(S_WS)}, s{sT0} offen\nbuffer_store_dwordx2 {vr(q, 2)}, v{vA}, {srd(S_WS)}, s{sT1} offen sc1'))
        g.branches([(f's_cmp_eq_u32 s{sW}, 0', modpub)])
        s.stamp('modpub')
        g.wait(v=tX)
        sm, sq = R.alloc(), R.alloc()
        I(f'v_mov_b32 v{sm}, 0\nv_mov_b32 v{sq}, 0')
        for i in range(8): I(f'v_dot2c_f32_bf16 v{sm}, s{sONES}, v{XS + i}\nv_dot2c_f32_bf16 v{sq}, v{XS + i}, v{XS + i}')
        s.rowred([sm, sq], 'v_add_f32')
        s.xsum(sm, do32=False); s.xsum(sq, do32=False)
        s.meanstd(sm, sq, 512)
        pr = R.alloc(2)
        I(f'v_mov_b32 v{pr}, v{sq}\nv_mov_b32 v{pr + 1}, v{sm}\ns_lshl_b32 s{sT0}, s{sW}, 4\ns_add_u32 s{sT0}, s{sT0}, {L_STAT}\n'
          f'v_lshrrev_b32 v{vA}, 5, v{vL}\nv_lshl_add_u32 v{vA}, v{vA}, 3, s{sT0}')
        s.setexec(0x100000001)
        I(f'ds_write_b64 v{vA}, {vr(pr, 2)}')
        s.setexec(-1)
        g.wait_all(v=False, l=True)
        I('s_barrier')
        R.rel(pr, 2); R.rel(sm); R.rel(sq); R.rel(XS, 8)
        ST = R.alloc(16); XN = R.alloc(16)
        I(f'v_mov_b32 v{vA}, {L_STAT}')
        for i in range(4): I(f'ds_read_b128 {vr(ST + 4 * i, 4)}, v{vA} offset:{16 * i}')
        for i in range(8): I(f'v_lshlrev_b32 v{XN + 2 * i}, 16, v{XC + i}\nv_and_b32 v{XN + 2 * i + 1}, 0xffff0000, v{XC + i}')
        g.wait_all(v=False, l=True)
        for i in range(8):
            for e in range(2): I(f'v_fma_f32 v{XN + 2 * i + e}, v{XN + 2 * i + e}, v{ST + 2 * i}, v{ST + 2 * i + 1}')
        R.rel(ST, 16); R.rel(XC, 8)
        xw = R.alloc()
        I(f's_lshl_b32 s{sA}, s{sXs}, 12\ns_add_u32 s{sA}, s{sA}, {XCCW}\nv_lshlrev_b32 v{vA}, 7, v{vL}')
        s.setexec(0xffffffff)
        s.poll(lambda: I(f'buffer_load_dword v{xw}, v{vA}, {srd(S_WS)}, s{sA} offen sc1'),
               lambda: I(f'v_xor_b32 v{t0}, s{sE}, v{xw}\nv_lshrrev_b32 v{t0}, 4, v{t0}\nv_cmp_ne_u32 vcc, 0, v{t0}'))
        I(f'v_cmp_ne_u32 vcc, s{sMODE}, v{xw}\ns_cmp_eq_u64 vcc, 0\ns_cselect_b32 s{sMODE}, 1, 0')
        if s.force_mode is not None: I(f's_mov_b32 s{sMODE}, {s.force_mode}')
        s.setexec(-1)
        R.rel(xw)
        WF = R.alloc(64)

        def wfr():
            I(f's_lshl_b32 s{sT0}, s{sW}, 14\ns_add_u32 s{sT0}, s{sT0}, {L_WK}\nv_lshl_add_u32 v{vB}, v{vR4}, 5, v{vC8}\nv_add_u32 v{vB}, s{sT0}, v{vB}')
            for k in range(16):
                I(f'ds_read_b64_tr_b16 {vr(WF + 4 * k, 2)}, v{vB} offset:{1024 * k}\nds_read_b64_tr_b16 {vr(WF + 4 * k + 2, 2)}, v{vB} offset:{1024 * k + 512}')
                if k % 4 == 3: g.wait(l=g.ltok() - 6)
            g.wait_all(v=False, l=True)
        g.branches([(f's_cmp_lt_u32 s{sW}, 2', wfr)])
        I(f's_lshl_b32 s{sT0}, s{sW}, 11\ns_add_u32 s{sT0}, s{sT0}, {L_MOD2}\nv_and_b32 v{vB}, 8, v{vC8}\nv_lshl_add_u32 v{vB}, v{vR4}, 4, v{vB}\nv_add_u32 v{vB}, s{sT0}, v{vB}')
        jobs = [dict(addr=vB, o1=k * 512, o2=k * 512 + 256, act=vr(SF + 4 * k, 4), acc=AC, first=(k == 0), wfirst=False) for k in range(4)]
        s.gemm(jobs, look=4, wn=2)
        I(f's_lshl_b32 s{sT0}, s{sW}, 2\ns_add_u32 s{sT0}, s{sT0}, {L_PART2}\nv_add_u32 v{vA}, s{sT0}, v{vL16}')
        s.setexec(0xff)
        I(f'ds_write_b32 v{vA}, v{AC}')
        s.setexec(-1)
        R.rel(SF, 16)
        s.stamp('premod')
        MG = R.alloc(8)
        I(f'v_lshlrev_b32 v{vA}, 4, v0\ns_lshl_b32 s{sA}, s{sXs}, 13\ns_add_u32 s{sA}, s{sA}, {MODA}\ns_add_u32 s{sB}, s{sA}, 4096\ns_mov_b32 s{sT3}, 0')

        def mloads():
            I(f'buffer_load_dwordx4 {vr(MG, 4)}, v{vA}, {srd(S_WS)}, s{sA} offen sc1\nbuffer_load_dwordx4 {vr(MG + 4, 4)}, v{vA}, {srd(S_WS)}, s{sB} offen sc1')
            I(f's_add_u32 s{sT3}, s{sT3}, 1\ns_and_b32 s{sT0}, s{sT3}, 3\ns_cmp_eq_u32 s{sT0}, 3\ns_cselect_b32 s{sT0}, {MODB - MODA}, 0\n'
              f's_lshl_b32 s{sA}, s{sXs}, 13\ns_add_u32 s{sA}, s{sA}, s{sT0}\ns_add_u32 s{sA}, s{sA}, {MODA}\ns_add_u32 s{sB}, s{sA}, 4096')

        def mcheck():
            for q in (1, 3, 5, 7): I(f'v_xor_b32 v{MG + q}, s{sE}, v{MG + q}')
            I(f'v_or3_b32 v{MG + 1}, v{MG + 1}, v{MG + 3}, v{MG + 5}\nv_or_b32 v{MG + 1}, v{MG + 1}, v{MG + 7}\nv_cmp_ne_u32 vcc, 0, v{MG + 1}')
        s.poll(mloads, mcheck)
        s.stamp('modgot')
        I(f'v_add_u32 v{vA}, {L_HROW}, v{vT4}')
        for i in range(8):
            I(f'v_fma_f32 v{XN + 2 * i}, v{XN + 2 * i}, v{MG + 4}, v{MG}\nv_fma_f32 v{XN + 2 * i + 1}, v{XN + 2 * i + 1}, v{MG + 6}, v{MG + 2}\n'
              f'v_cvt_pk_bf16_f32 v{XN + 2 * i}, v{XN + 2 * i}, v{XN + 2 * i + 1}\nds_write_b32 v{vA}, v{XN + 2 * i} offset:{1040 * i}')
        g.wait_all(v=False, l=True)
        I('s_barrier')
        R.rel(MG, 8); R.rel(XN, 16); R.rel(vT4)
        I(f's_lshl_b32 s{sT0}, s{sG}, 1\ns_lshr_b32 s{sT1}, s{sJ}, 2\ns_add_u32 s{sT0}, s{sT0}, s{sT1}\ns_mul_i32 s{sREC}, s{sT0}, {REC}\ns_add_u32 s{sREC}, s{sREC}, {KV}\n'
          f's_lshl_b32 s{sFRG}, s{sG}, 16\ns_lshl_b32 s{sT0}, s{sW}, 14\ns_add_u32 s{sFRG}, s{sFRG}, s{sT0}')
        HFm = R.alloc(64); kn = R.alloc(); fg = R.alloc(2)

        def kvgemm(wfirst):
            I(f'v_and_b32 v{vA}, 7, v{vL}\nv_mul_u32_u24 v{vA}, 1040, v{vA}\nv_lshl_add_u32 v{vA}, v{vGQ}, 3, v{vA}\nv_add_u32 v{vA}, {L_HROW}, v{vA}')
            tk = []
            for k in range(8):
                I(f'ds_read2_b64 {vr(HFm + 4 * k, 4)}, v{vA} offset0:{8 * k} offset1:{8 * k + 4}'); tk.append(g.ltok())
            for k in range(16):
                if k + 8 < 16:
                    I(f'ds_read2_b64 {vr(HFm + 4 * (k + 8), 4)}, v{vA} offset0:{8 * (k + 8)} offset1:{8 * (k + 8) + 4}'); tk.append(g.ltok())
                if k % 2 == 0: g.wait(l=tk[k + 1])
                w_, h_ = vr(WF + 4 * k, 4), vr(HFm + 4 * k, 4)
                s.mf16(vr(AC, 4), w_ if wfirst else h_, h_ if wfirst else w_, '0' if k == 0 else None)

        def kwave():
            kvgemm(True)
            I(f'v_lshrrev_b32 v{vB}, 2, v{vL15}\nv_lshlrev_b32 v{vB}, 3, v{vB}\nv_and_b32 v{t0}, 3, v{vL15}\nv_add_u32 v{vB}, v{vB}, v{t0}\n'
              f'v_and_b32 v{t0}, 1, v{vGQ}\nv_lshl_add_u32 v{vB}, v{t0}, 5, v{vB}\nv_lshlrev_b32 v{vB}, 4, v{vB}\n'
              f'v_lshrrev_b32 v{t0}, 1, v{vGQ}\nv_lshl_add_u32 v{vB}, v{t0}, 3, v{vB}\n'
              f's_and_b32 s{sT0}, s{sJ}, 2\ns_lshl_b32 s{sT0}, s{sT0}, 7\ns_and_b32 s{sT1}, s{sJ}, 1\ns_lshl_b32 s{sT1}, s{sT1}, 6\n'
              f's_add_u32 s{sT0}, s{sT0}, s{sT1}\ns_add_u32 s{sT0}, s{sT0}, s{sREC}')
            I(f'v_cvt_pk_bf16_f32 v{AC}, v{AC}, v{AC + 1}\nv_cvt_pk_bf16_f32 v{AC + 1}, v{AC + 2}, v{AC + 3}')
            s.setexec(0x00ff00ff00ff00ff)
            I(f'buffer_store_dwordx2 {vr(AC, 2)}, v{vB}, {srd(S_WS)}, s{sT0} offen sc1')
            s.setexec(-1)
            I(f'v_mov_b32 v{kn}, 0\nv_dot2c_f32_bf16 v{kn}, v{AC}, v{AC}\nv_dot2c_f32_bf16 v{kn}, v{AC + 1}, v{AC + 1}')
            s.xsum(kn)
            s.rowred([kn], 'v_max_f32', steps=3)

        def vwave():
            kvgemm(False)
            I(f'v_lshlrev_b32 v{vB}, 4, v{vL15}\nv_lshl_add_u32 v{vB}, v{vGQ}, 3, v{vB}\n'
              f's_and_b32 s{sT0}, s{sJ}, 3\ns_lshl_b32 s{sT0}, s{sT0}, 8\ns_add_u32 s{sT0}, s{sT0}, s{sREC}\nv_mov_b32 v{kn}, 0')
            I(f'v_cvt_pk_bf16_f32 v{AC}, v{AC}, v{AC + 1}\nv_cvt_pk_bf16_f32 v{AC + 1}, v{AC + 2}, v{AC + 3}')
            s.setexec(0xffffffff)
            I(f'buffer_store_dwordx2 {vr(AC, 2)}, v{vB}, {srd(S_WS)}, s{sT0} offen offset:1024 sc1')
            s.setexec(-1)

            def consts():
                q = AC + 4
                I(f'v_cmp_eq_u32 vcc, 0, v{vL}\nv_mov_b32 v{t0}, s{sONES}\nv_cndmask_b32 v{q}, 0, v{t0}, vcc\nv_mov_b32 v{q + 1}, v{q}\nv_mov_b32 v{q + 2}, v{q}\nv_mov_b32 v{q + 3}, v{q}')
                s.setexec(3)
                I(f'buffer_store_dwordx4 {vr(q, 4)}, v{vL16}, {srd(S_WS)}, s{sREC} offen offset:2048 sc1')
                s.setexec(-1)
            g.branches([(f's_and_b32 s{sT1}, s{sJ}, 3\ns_cmp_eq_u32 s{sT1}, 0', consts)])

        def hwave():
            I(f'v_and_b32 v{t0}, 7, v{vL}\nv_mul_u32_u24 v{vA}, 1040, v{t0}\nv_bfe_u32 v{t1}, v{vL}, 3, 2\nv_lshl_add_u32 v{vA}, v{t1}, 3, v{vA}\n'
              f'v_lshrrev_b32 v{t2}, 5, v{vL}\nv_lshl_add_u32 v{vA}, v{t2}, 6, v{vA}\n'
              f's_lshl_b32 s{sT0}, s{sW}, 9\ns_add_u32 s{sT0}, s{sT0}, {L_HROW - 1024}\nv_add_u32 v{vA}, s{sT0}, v{vA}')
            for i in range(4): I(f'ds_read2_b64 {vr(HFm + 4 * i, 4)}, v{vA} offset0:{16 * i} offset1:{16 * i + 4}')
            I(f'v_lshl_add_u32 v{vB}, v{t1}, 4, v{t0}\nv_lshlrev_b32 v{vB}, 4, v{vB}\nv_lshl_add_u32 v{vB}, v{t2}, 10, v{vB}\n'
              f's_lshl_b32 s{sT0}, s{sG}, 16\ns_lshr_b32 s{sT1}, s{sJ}, 1\ns_lshl_b32 s{sT1}, s{sT1}, 14\ns_add_u32 s{sT0}, s{sT0}, s{sT1}\n'
              f's_and_b32 s{sT1}, s{sJ}, 1\ns_lshl_b32 s{sT1}, s{sT1}, 7\ns_add_u32 s{sT0}, s{sT0}, s{sT1}\n'
              f's_lshl_b32 s{sT1}, s{sW}, 13\ns_add_u32 s{sT0}, s{sT0}, s{sT1}\ns_add_u32 s{sT0}, s{sT0}, {H - 16384}\ns_add_u32 s{sT1}, s{sT0}, 4096')
            g.wait_all(v=False, l=True)

            def st(f):
                for i in range(4):
                    I(f'buffer_store_dwordx4 {vr(HFm + 4 * i, 4)}, v{vB}, {srd(S_WS)}, s{sT0 if i < 2 else sT1} offen offset:{2048 * (i & 1)} {f}')
            s.local_store(st)
            g.wait_all(v=True, l=False)
        g.branches([(f's_cmp_eq_u32 s{sW}, 0', kwave), (f's_cmp_eq_u32 s{sW}, 1', vwave), (None, hwave)])
        I('s_barrier')
        R.rel(WF, 64)
        s.stamp('kvst')

        def kvflag():
            g.wait_all(v=True, l=False, force=True)
            I(f'v_mov_b32 v{fg}, s{sE}\nv_mov_b32 v{fg + 1}, v{kn}\nv_mov_b32 v{vB}, 0\n'
              f's_lshl_b32 s{sA}, s{sXs}, 9\ns_add_u32 s{sA}, s{sA}, {KVL}\ns_lshl_b32 s{sT0}, s{sR}, 4\ns_lshl_b32 s{sT1}, s{sW}, 3\ns_add_u32 s{sT0}, s{sT0}, s{sT1}\ns_add_u32 s{sB}, s{sT0}, s{sA}')
            s.setexec(1)
            s.local_store(lambda f: I(f'buffer_store_dwordx2 {vr(fg, 2)}, v{vB}, {srd(S_WS)}, s{sB} offen {f}'))
            s.setexec(-1)

            def leader():
                I(f'v_lshlrev_b32 v{vA}, 3, v{vL}')
                s.poll(lambda: I(f'buffer_load_dwordx2 {vr(fg, 2)}, v{vA}, {srd(S_WS)}, s{sA} offen sc1'), lambda: I(f'v_cmp_ne_u32 vcc, s{sE}, v{fg}'))
                s.rowred([fg + 1], 'v_max_f32')
                s.xsum(fg + 1, 'v_max_f32')
                I(f's_lshl_b32 s{sT0}, s{sXs}, 7\ns_add_u32 s{sT0}, s{sT0}, {KVG}\nv_mov_b32 v{fg}, s{sE}')
                s.setexec(1)
                I(f'buffer_store_dwordx2 {vr(fg, 2)}, v{vB}, {srd(S_WS)}, s{sT0} offen sc1')
                s.setexec(-1)
            g.branches([(f's_or_b32 s{sT0}, s{sR}, s{sW}\ns_cmp_eq_u32 s{sT0}, 0', leader)])

        def hflag():
            I(f's_lshl_b32 s{sT0}, s{sG}, 7\ns_lshl_b32 s{sT1}, s{sJ}, 2\ns_add_u32 s{sT0}, s{sT0}, s{sT1}\ns_add_u32 s{sA}, s{sT0}, {HF}\nv_mov_b32 v{fg}, s{sE}\nv_mov_b32 v{vB}, 0')
            s.setexec(1)
            s.local_store(lambda f: I(f'buffer_store_dword v{fg}, v{vB}, {srd(S_WS)}, s{sA} offen {f}'))
            s.setexec(-1)

        def mod2pub():
            I(f's_lshl_b32 s{sT0}, s{sXs}, 11\ns_lshl_b32 s{sT1}, s{sR}, 6\ns_add_u32 s{sT0}, s{sT0}, s{sT1}\ns_add_u32 s{sT0}, s{sT0}, {MOD2}')
            publish_sum(L_PART2, 8, f's_lshr_b32 s{sT1}, s{sXs}, 1\ns_cmp_eq_u32 s{sT1}, 2',
                        lambda q: I(f'buffer_store_dwordx2 {vr(q, 2)}, v{vA}, {srd(S_WS)}, s{sT0} offen sc1'))
        g.branches([(f's_cmp_lt_u32 s{sW}, 2', kvflag), (f's_cmp_eq_u32 s{sW}, 2', hflag), (None, mod2pub)])
        R.rel(kn); R.rel(AC, 8)
        I(f's_lshl_b32 s{sA}, s{sG}, 7\ns_add_u32 s{sA}, s{sA}, {HF}\nv_lshlrev_b32 v{vA}, 2, v{vL}')
        s.flag_poll(vA, 8, f's{sA}')
        s.stamp('hflag')
        vIM = R.alloc(4)
        I(f'v_bfe_u32 v{t0}, v{vL}, 3, 2\nv_lshl_add_u32 v{t1}, v{vR4}, 7, v{vC8}')
        for nt in range(4): I(f'v_xor_b32 v{t2}, {nt}, v{t0}\nv_lshl_add_u32 v{vIM + nt}, v{t2}, 5, v{t1}')
        toks = []
        for k in range(16):
            if k % 4 == 0: I(f's_add_u32 s{sT0}, s{sFRG}, {H + 1024 * k}')
            I(f'buffer_load_dwordx4 {vr(HFm + 4 * k, 4)}, v{vL16}, {srd(S_WS)}, s{sT0} offen offset:{1024 * (k % 4)} sc1'); toks.append(g.vtok())
        QA = R.alloc(16)
        jobs = [dict(addr=vIM + nt, o1=L_WQ + 4096 * k, o2=L_WQ + 4096 * k + 2048, act=vr(HFm + 4 * k, 4), vtok=toks[k], acc=QA + 4 * nt, first=(k == 0), wfirst=True)
                for k in range(16) for nt in range(4)]
        s.gemm(jobs)
        R.rel(HFm, 64)
        I(f's_and_b32 s{sT0}, s{sW}, 1\ns_lshl_b32 s{sT0}, s{sT0}, 8\ns_lshr_b32 s{sT1}, s{sW}, 1\ns_lshl_b32 s{sT1}, s{sT1}, 12\ns_add_u32 s{sT0}, s{sT0}, s{sT1}\ns_add_u32 s{sT0}, s{sT0}, {L_QX}\n'
          f'v_and_b32 v{t0}, 1, v{vGQ}\nv_lshl_add_u32 v{vA}, v{t0}, 5, v{vL15}\nv_lshlrev_b32 v{vA}, 4, v{vA}\nv_lshrrev_b32 v{t0}, 1, v{vGQ}\n'
          f'v_lshl_add_u32 v{vA}, v{t0}, 3, v{vA}\nv_add_u32 v{vA}, s{sT0}, v{vA}\ns_mov_b32 s{sM0}, {fl(0.25 * LOG2E)}\ns_mov_b32 s{sM0 + 1}, {fl(0.25 * LOG2E)}')
        for h in range(4):
            b_ = QA + 4 * h
            I(f'v_pk_mul_f32 {vr(b_, 2)}, {vr(b_, 2)}, s[{sM0}:{sM0 + 1}]\nv_pk_mul_f32 {vr(b_ + 2, 2)}, {vr(b_ + 2, 2)}, s[{sM0}:{sM0 + 1}]\n'
              f'v_cvt_pk_bf16_f32 v{b_}, v{b_}, v{b_ + 1}\nv_cvt_pk_bf16_f32 v{b_ + 1}, v{b_ + 2}, v{b_ + 3}\nds_write_b64 v{vA}, {vr(b_, 2)} offset:{1024 * h}')
        g.wait_all(v=False, l=True)
        I('s_barrier')
        Q = QA
        I(f's_and_b32 s{sT0}, s{sW}, 1\ns_lshl_b32 s{sT0}, s{sT0}, 11\ns_lshr_b32 s{sT1}, s{sW}, 1\ns_lshl_b32 s{sT1}, s{sT1}, 12\ns_add_u32 s{sT1}, s{sT1}, {L_QX}\n'
          f's_add_u32 s{sT2}, s{sT1}, s{sT0}\ns_xor_b32 s{sT0}, s{sT0}, 2048\ns_add_u32 s{sT1}, s{sT1}, s{sT0}\n'
          f'v_add_u32 v{vA}, s{sT2}, v{vL16}\nv_add_u32 v{vB}, s{sT1}, v{vL16}')
        for q in range(4): I(f'ds_read_b128 {vr(Q + 4 * q, 4)}, v{vA if q < 2 else vB} offset:{1024 * (q & 1)}')
        QN = R.alloc(4)
        for q in range(4): I(f'v_mov_b32 v{QN + q}, 0')
        g.wait_all(v=False, l=True)
        for i in range(4):
            for q in range(4): I(f'v_dot2c_f32_bf16 v{QN + q}, v{Q + 4 * q + i}, v{Q + 4 * q + i}')
        for q in range(4): s.xsum(QN + q, do16=False)
        vK, vV0, vV1 = R.alloc(), R.alloc(), R.alloc()
        s.vWIN = R.alloc(7, align=1); vSP = R.alloc(4); vXA = R.alloc()
        I(f's_and_b32 s{sT0}, s{sW}, 1\ns_mul_i32 s{sT0}, s{sT0}, {HALF}\ns_lshr_b32 s{sT1}, s{sW}, 1\ns_lshl_b32 s{sT1}, s{sT1}, 10\ns_add_u32 s{sKVO}, s{sT0}, s{sT1}\n'
          f'v_add_u32 v{vK}, s{sT0}, v{vL16}\n'
          f'v_and_b32 v{t0}, 31, v{vL}\nv_lshrrev_b32 v{t1}, 5, v{vL}\nv_lshlrev_b32 v{t1}, 8, v{t1}\nv_lshl_add_u32 v{t1}, v{t0}, 4, v{t1}\nv_add_u32 v{t1}, 1024, v{t1}\n'
          f'v_and_b32 v{t2}, 27, v{t0}\nv_cmp_eq_u32 vcc, 16, v{t2}\nv_mov_b32 v{t2}, 2064\nv_mov_b32 v{vV1}, 2048\nv_cndmask_b32 v{t2}, v{t2}, v{vV1}, vcc\n'
          f'v_cmp_gt_u32 vcc, 16, v{t0}\nv_add_u32 v{vV1}, 512, v{t1}\nv_cndmask_b32 v{vV0}, v{t2}, v{t1}, vcc\nv_cndmask_b32 v{vV1}, v{t2}, v{vV1}, vcc\n'
          f'v_add_u32 v{vV0}, s{sT0}, v{vV0}\nv_add_u32 v{vV1}, s{sT0}, v{vV1}')
        for q in range(7):
            I(f'v_add_u32 v{t0}, {64 * q}, v{vL}\nv_mul_u32_u24 v{t1}, 4682, v{t0}\nv_lshrrev_b32 v{t1}, 16, v{t1}\nv_mul_u32_u24 v{t2}, 14, v{t1}\nv_sub_u32 v{t0}, v{t0}, v{t2}\n'
              f'v_mul_u32_u24 v{t1}, 3584, v{t1}\nv_lshl_add_u32 v{s.vWIN + q}, v{t0}, 4, v{t1}')
        I(f's_mul_i32 s{s.sWIN}, s{sW}, {32 * 3584}\ns_mul_i32 s{sT0}, s{sJ}, 224\ns_add_u32 s{s.sWIN}, s{s.sWIN}, s{sT0}\ns_mul_i32 s{s.sW7}, s{sW}, 7168')
        I(f'v_lshlrev_b32 v{t0}, 12, v{vL15}\nv_lshl_add_u32 v{t0}, v{vGQ}, 4, v{t0}')
        for u in range(4):
            I(f's_add_u32 s{sT0}, s{sW}, {u}\ns_and_b32 s{sT0}, s{sT0}, 3\ns_lshl_b32 s{sT0}, s{sT0}, 16\ns_lshl_b32 s{sT1}, s{sG}, 18\ns_add_u32 s{sT0}, s{sT0}, s{sT1}\n'
              f's_lshl_b32 s{sT1}, s{sW}, 7\ns_add_u32 s{sT0}, s{sT0}, s{sT1}\nv_add_u32 v{vSP + u}, s{sT0}, v{t0}')
        for xi in range(8): I(f's_xor_b32 s{sSX + xi}, s{sXs}, {xi}\ns_lshl_b32 s{sSX + xi}, s{sSX + xi}, 9')
        I(f'v_lshlrev_b32 v{vXA}, 10, v{vL15}\nv_lshl_add_u32 v{vXA}, v{vGQ}, 3, v{vXA}\n'
          f's_lshl_b32 s{sROW}, s{sG}, 16\ns_lshl_b32 s{sT0}, s{sW}, 14\ns_add_u32 s{sROW}, s{sROW}, s{sT0}\ns_add_u32 s{sROW}, s{sROW}, s{s.sJ128}')
        s.stamp('qdone')
        I(f'v_lshlrev_b32 v{vA}, 7, v{vL}\ns_mov_b32 s{sA}, {KVG}')
        s.poll(lambda: I(f'buffer_load_dwordx2 {vr(fg, 2)}, v{vA}, {srd(S_WS)}, s{sA} offen sc1'), lambda: I(f'v_cmp_ne_u32 vcc, s{sE}, v{fg}'), mask=0xff)
        s.stamp('kvflag')

        def kvdma(i):
            if i == 32:
                I(f's_and_b32 s{sT0}, s{sW}, 1\ns_mul_i32 s{sT0}, s{sT0}, {HALF}\ns_add_u32 m0, s{sT0}, 65536\ns_add_u32 s{sT0}, s{sT0}, {KV + 65536}')
                s.dma(vL16, S_WS, f's{sT0}', None, fl_='sc1')
            else:
                if i % 2 == 0: I(f's_add_u32 m0, s{sKVO}, {2048 * i}\ns_add_u32 s{sB}, s{sKVO}, {KV + 2048 * i}')
                s.dma(vL16, S_WS, f's{sB}', None, off=2048 * (i & 1), fl_='sc1')
        for i in range(6): kvdma(i)
        tA = g.vtok()
        for i in range(6, 14): kvdma(i)
        tB = g.vtok()
        s.rowred([fg + 1], 'v_max_f32', steps=3)
        I(f'v_readfirstlane_b32 s{sKM}, v{fg + 1}')

        def epoch():
            I(f'v_mov_b32 v{fg}, s{sE}\nv_mov_b32 v{vA}, 0\ns_mov_b64 exec, 1\nbuffer_store_dword v{fg}, v{vA}, {srd(S_WS)}, 0 offen sc1\ns_mov_b64 exec, -1')
        g.branches([(f's_or_b32 s{sT0}, s2, s{sW}\ns_cmp_eq_u32 s{sT0}, 0', epoch)])
        R.rel(fg, 2); R.rel(vIM, 4); R.rel(vR4); R.rel(vC8)
        Oa = R.alloc(64); CN = R.alloc(64); Sb = R.alloc(32); Pb = R.alloc(16); KF = R.alloc(8); VF = R.alloc(16)
        for q in range(4):
            I(f'v_mul_f32 v{QN + q}, s{sKM}, v{QN + q}\nv_sqrt_f32 v{QN + q}, v{QN + q}\nv_mul_f32 v{QN + q}, {fl(1.001)}, v{QN + q}')
        I(f'v_max3_f32 v{t0}, v{QN}, v{QN + 1}, v{QN + 2}\nv_max_f32 v{t0}, v{t0}, v{QN + 3}\nv_add_f32 v{t1}, v{QN}, v{QN + 1}\nv_add_f32 v{t2}, v{QN + 2}, v{QN + 3}\nv_add_f32 v{t1}, v{t1}, v{t2}\n'
          f'v_cmp_nge_f32 vcc, {fl(BOUND_T if not s.force_slow else -1.0)}, v{t0}\nv_cmp_u_f32 s[{sM0}:{sM0 + 1}], v{t1}, v{t1}\ns_or_b64 vcc, vcc, s[{sM0}:{sM0 + 1}]')

        def slow():
            L = g.label('mx')
            for q in range(4): I(f'v_mov_b32 v{QN + q}, 0xff7fffff')
            I(f's_mov_b32 s{sA}, {KV}\n{L}:\nbuffer_load_dwordx4 {vr(KF, 4)}, v{vL16}, {srd(S_WS)}, s{sA} offen sc1')
            g.wait_all(v=True, l=False, force=True)
            for q in range(4): s.mf32(vr(Oa + 16 * q, 16), vr(KF, 4), vr(Q + 4 * q, 4), '0')
            for q in range(4):
                for i in range(0, 16, 2): I(f'v_max3_f32 v{QN + q}, v{QN + q}, v{Oa + 16 * q + i}, v{Oa + 16 * q + i + 1}')
            I(f's_add_u32 s{sA}, s{sA}, {REC}\ns_cmp_lt_u32 s{sA}, {KV + 64 * REC}\ns_cbranch_scc1 {L}')
            for q in range(4): s.xsum(QN + q, 'v_max_f32', do16=False)
        g.branches([('s_cmp_lg_u64 vcc, 0', slow)])
        for q in range(4):
            I(f'v_sub_f32 v{CN + 16 * q}, 0, v{QN + q}\nv_sub_f32 v{CN + 16 * q + 1}, 0, v{QN + q}')
            for i in range(2, 16, 2): I(f'v_mov_b64 {vr(CN + 16 * q + i, 2)}, {vr(CN + 16 * q, 2)}')
        for i in range(0, 64, 2): I(f'v_mov_b64 {vr(Oa + i, 2)}, 0')
        R.rel(QN, 4)
        XR = [R.alloc(2) for _ in range(4)]; M2G = R.alloc(2); vBS = R.alloc()
        g.wait(v=tA)
        I('s_barrier')
        s.stamp('kvA')
        I(f'ds_read_b128 {vr(KF, 4)}, v{vK}\nds_read_b128 {vr(VF, 4)}, v{vV0}\nds_read_b128 {vr(VF + 4, 4)}, v{vV1}')
        g.wait_all(v=False, l=True)
        s.mf32(vr(Sb, 16), vr(KF, 4), vr(Q, 4), vr(CN, 16))
        bg = {}

        def put(t, q, fn): bg.setdefault((t, q), []).append(fn)
        slots = [(t, q) for t in range(32) for q in range(4)]
        tok = {}
        n = 0
        for i in range(14, 24): put(*slots[n], lambda i=i: kvdma(i)); n += 1
        put(*slots[n - 1], lambda: tok.__setitem__('C', g.vtok()))
        for i in range(24, 33): put(*slots[n], lambda i=i: kvdma(i)); n += 1
        put(*slots[n - 1], lambda: tok.__setitem__('D', g.vtok()))
        for f in s.win_round(2, 0, R_TOP): put(*slots[n], f); n += 1

        def wsp(u, xi, e):
            I(f'buffer_load_dwordx4 {ar((u * 16 + 2 * xi + e) * 4, 4)}, v{vSP + u}, {srd(S_WSP)}, s{sSX + xi} offen offset:{64 * e}')
        sp = [(u, xi, e) for u in range(4) for xi in range(8) for e in range(2)]
        sWOC = sWQC
        wo_list = []
        for i in range(16):
            wo_list.append(lambda i=i: s.img_dma(S_WO, R_H0A if i < 8 else R_H1A - 32768, (i if i < 8 else i + 24, sWOC)))
        while n < 60: put(*slots[n], lambda a=sp.pop(0): wsp(*a)); n += 1
        put(15, 0, lambda: I(f's_lshl_b32 s{sWOC}, s{sW}, 3'))
        n = 61
        for f in wo_list: put(*slots[n], f); n += 1
        while sp: put(*slots[n], lambda a=sp.pop(0): wsp(*a)); n += 1

        def xres():
            for nt in range(4): I(f'buffer_load_dwordx2 {vr(XR[nt], 2)}, v{vXA}, {srd(S_X)}, s{sROW} offen offset:{32 * nt}')
        put(*slots[n], xres); n += 1

        def misc():
            I(f's_lshl_b32 s{sT0}, s{sW}, 12\ns_lshl_b32 s{sT1}, s{sJ}, 9\ns_add_u32 s{sT0}, s{sT0}, s{sT1}\ns_add_u32 s{sA}, s{sT0}, {MOD2}\nv_lshlrev_b32 v{vA}, 3, v{vL}\n'
              f'buffer_load_dwordx2 {vr(M2G, 2)}, v{vA}, {srd(S_WS)}, s{sA} offen sc1')
            I(f's_lshl_b32 s{sT0}, s{sG}, 7\ns_lshl_b32 s{sT1}, s{sW}, 5\ns_add_u32 s{sT0}, s{sT0}, s{sT1}\nv_lshlrev_b32 v{vBS}, 1, v{vL15}\n'
              f'buffer_load_ushort v{vBS}, v{vBS}, {srd(S_BSP)}, s{sT0} offen')
        put(*slots[n], misc); n += 1
        assert n <= 126, n
        bars = {2: 'B', 8: 'C', 15: 'D', 23: None}
        tok['B'] = tB
        for t in range(32):
            cur = t & 1; nx = cur ^ 1
            for q in range(4):
                S = Sb + 16 * (q & 1); Sn = Sb + 16 * ((q + 1) & 1); P = Pb + 8 * (q & 1); Pp = Pb + 8 * ((q + 1) & 1)
                first = (t == 0 and q == 0); last = (t == 31 and q == 3)
                qp = (q + 3) & 3; qn = (q + 1) & 3
                Vp = VF + 8 * (nx if q == 0 else cur)
                Kn = KF + 4 * (nx if q == 3 else cur)
                for i in range(8):
                    if i == 0 and q == 0 and t in bars:
                        if bars[t]: g.wait(v=tok[bars[t]])
                        I('s_barrier')
                    if i == 1 and not first: I(f'v_cvt_pk_bf16_f32 v{Pp + 7}, v{Sn + 14}, v{Sn + 15}')
                    if i == 2 and not last:
                        if q == 3: g.wait_all(v=False, l=True)
                        s.mf32(vr(Sn, 16), vr(Kn, 4), vr(Q + 4 * qn, 4), vr(CN + 16 * qn, 16))
                    if i == 3:
                        for f in bg.get((t, q), []): f()
                    if i == 5 and not first: s.mf32(vr(Oa + 16 * qp, 16), vr(Vp + 4, 4), vr(Pp + 4, 4))
                    if i == 6 and t < 31:
                        if q == 0: I(f'ds_read_b128 {vr(KF + 4 * nx, 4)}, v{vK} offset:{REC * (t + 1)}')
                        if q == 1: I(f'ds_read_b128 {vr(VF + 8 * nx, 4)}, v{vV0} offset:{REC * (t + 1)}\nds_read_b128 {vr(VF + 8 * nx + 4, 4)}, v{vV1} offset:{REC * (t + 1)}')
                    if i == 7: s.mf32(vr(Oa + 16 * q, 16), vr(VF + 8 * cur, 4), vr(P, 4))
                    I(f'v_exp_f32 v{S + 2 * i}, v{S + 2 * i}\nv_exp_f32 v{S + 2 * i + 1}, v{S + 2 * i + 1}')
                    if i > 0: I(f'v_cvt_pk_bf16_f32 v{P + i - 1}, v{S + 2 * i - 2}, v{S + 2 * i - 1}')
        I(f'v_cvt_pk_bf16_f32 v{Pb + 15}, v{Sb + 30}, v{Sb + 31}')
        s.mf32(vr(Oa + 48, 16), vr(VF + 12, 4), vr(Pb + 12, 4))
        s.stamp('attn', True)
        R.rel(CN, 64); R.rel(Sb, 32); R.rel(Pb, 16); R.rel(KF, 8); R.rel(VF, 16); R.rel(Q, 16); R.rel(vSP, 4)
        for r_ in (vK, vV0, vV1): R.rel(r_)
        L1 = g.label('m2ok')
        g.wait_all(v=True, l=False)
        I(f'v_cmp_ne_u32 vcc, s{sE}, v{M2G + 1}\ns_cbranch_vccz {L1}')
        s.poll(lambda: I(f'buffer_load_dwordx2 {vr(M2G, 2)}, v{vA}, {srd(S_WS)}, s{sA} offen sc1'), lambda: I(f'v_cmp_ne_u32 vcc, s{sE}, v{M2G + 1}'))
        I(f'{L1}:\nv_lshlrev_b32 v{vA}, 2, v0\nv_add_u32 v{vA}, {L_MODV}, v{vA}\nds_write_b32 v{vA}, v{M2G}')
        R.rel(M2G, 2)
        vA4 = R.alloc()
        I(f's_lshr_b32 s{sT0}, s{sW}, 1\ns_mul_i32 s{sT0}, s{sT0}, {R_H1B - R_H0B}\ns_add_u32 s{sT0}, s{sT0}, {R_H0B}\ns_and_b32 s{sT1}, s{sW}, 1\ns_mul_i32 s{sT2}, s{sT1}, 4608\n'
          f's_add_u32 s{sT2}, s{sT2}, s{sT0}\ns_xor_b32 s{sT1}, s{sT1}, 1\ns_mul_i32 s{sT1}, s{sT1}, 4608\ns_add_u32 s{sT1}, s{sT1}, s{sT0}\n'
          f'v_add_u32 v{vA}, s{sT2}, v{vL16}\nv_lshl_add_u32 v{vA4}, v{vL}, 2, s{sT2}')
        for hp in range(2):
            o_ = Oa + 16 * (2 + hp)
            I(f'ds_write_b128 v{vA}, {vr(o_, 4)} offset:{2304 * hp}\nds_write_b128 v{vA}, {vr(o_ + 4, 4)} offset:{2304 * hp + 1024}\nds_write_b32 v{vA4}, v{o_ + 8} offset:{2304 * hp + 2048}')
        I(f'v_add_u32 v{vB}, s{sT1}, v{vL16}\nv_lshl_add_u32 v{t0}, v{vL}, 2, s{sT1}')
        g.wait_all(v=False, l=True)
        I('s_barrier')
        for hp in range(2):
            o_ = Oa + 16 * (2 + hp)
            I(f'ds_read_b128 {vr(o_, 4)}, v{vB} offset:{2304 * hp}\nds_read_b128 {vr(o_ + 4, 4)}, v{vB} offset:{2304 * hp + 1024}\nds_read_b32 v{o_ + 8}, v{t0} offset:{2304 * hp + 2048}')
        I(f'v_and_b32 v{t1}, 1, v{vGQ}\nv_lshlrev_b32 v{t1}, 14, v{t1}\nv_lshl_add_u32 v{t1}, v{vL15}, 4, v{t1}\nv_lshrrev_b32 v{t2}, 5, v{vL}\nv_lshl_add_u32 v{vA}, v{t2}, 8, v{t1}\n'
          f's_lshl_b32 s{sT0}, s{sG}, 16\ns_lshr_b32 s{sT1}, s{sW}, 1\ns_lshl_b32 s{sT1}, s{sT1}, 15\ns_add_u32 s{sT0}, s{sT0}, s{sT1}\n'
          f's_lshl_b32 s{sT1}, s{sJ}, 11\ns_add_u32 s{sT0}, s{sT0}, s{sT1}\ns_and_b32 s{sT1}, s{sW}, 1\ns_lshl_b32 s{sT1}, s{sT1}, 10\ns_add_u32 s{sT0}, s{sT0}, s{sT1}\ns_add_u32 s{sA}, s{sT0}, {O}')
        g.wait_all(v=False, l=True)
        for hp in range(2):
            a_ = Oa + 16 * hp; o_ = Oa + 16 * (2 + hp)
            I(f'v_add_f32 v{a_ + 8}, v{a_ + 8}, v{o_ + 8}\nv_rcp_f32 v{a_ + 8}, v{a_ + 8}')
            for i in range(0, 8, 2): I(f'v_pk_add_f32 {vr(a_ + i, 2)}, {vr(a_ + i, 2)}, {vr(o_ + i, 2)}')
            for i in range(0, 8, 2): I(f'v_pk_mul_f32 {vr(a_ + i, 2)}, {vr(a_ + i, 2)}, {vr(a_ + 8, 2)} op_sel_hi:[1,0]')
            for i in range(4): I(f'v_cvt_pk_bf16_f32 v{a_ + i}, v{a_ + 2 * i}, v{a_ + 2 * i + 1}')
        s.local_store(lambda f: I(f'buffer_store_dwordx4 {vr(Oa, 4)}, v{vA}, {srd(S_WS)}, s{sA} offen {f}\nbuffer_store_dwordx4 {vr(Oa + 16, 4)}, v{vA}, {srd(S_WS)}, s{sA} offen offset:512 {f}'))
        R.rel(vA4)
        vIM = R.alloc(4); vIO = R.alloc(4)
        I(f'v_bfe_u32 v{t0}, v{vL}, 3, 2\nv_and_b32 v{t1}, 3, v{vL}\nv_lshlrev_b32 v{t1}, 3, v{t1}\nv_lshrrev_b32 v{t2}, 2, v{vL}\nv_lshl_add_u32 v{t1}, v{t2}, 7, v{t1}')
        for nt in range(4): I(f'v_xor_b32 v{t2}, {nt}, v{t0}\nv_lshl_add_u32 v{vIM + nt}, v{t2}, 5, v{t1}')
        I(f'v_lshrrev_b32 v{t2}, 5, v{vL}\nv_lshlrev_b32 v{t2}, 10, v{t2}')
        for nt in range(4): I(f'v_add_u32 v{vIO + nt}, v{vIM + nt}, v{t2}')
        s.group_flag(OF)
        R.rel(Oa, 64)
        s.stamp('oflag')
        if s.stop == 'attn': return s.finish()
        BF = R.alloc(64); toks = []
        for k in range(16):
            if k % 4 == 0: I(f's_add_u32 s{sT2}, s{sFRG}, {O + 1024 * k}')
            I(f'buffer_load_dwordx4 {vr(BF + 4 * k, 4)}, v{vL16}, {srd(S_WS)}, s{sT2} offen offset:{1024 * (k % 4)} sc1'); toks.append(g.vtok())
        for f in s.win_round(2, 1, R_H0B) + s.win_round(2, 2, R_H1B): f()
        MV = R.alloc(16); DA = R.alloc(16)
        I(f'v_lshlrev_b32 v{vB}, 4, v{vGQ}\nv_add_u32 v{vB}, {L_MODV}, v{vB}')
        for nt in range(4): I(f'ds_read_b128 {vr(MV + 4 * nt, 4)}, v{vB} offset:{64 * nt}')
        jobs = []
        for k in range(16):
            for nt in range(4):
                o1 = 4096 * (k & 7)
                jobs.append(dict(addr=vIO + nt, o1=o1, o2=o1 + 1024, act=vr(BF + 4 * k, 4), vtok=toks[k], acc=DA + 4 * nt, first=(k == 0), wfirst=True))

        def bump():
            for nt in range(4): I(f'v_add_u32 v{vIO + nt}, {R_H1A}, v{vIO + nt}')
        bump.fence = True
        s.gemm(jobs, hooks={32: bump})
        R.rel(vIO, 4)
        X1 = R.alloc(8); XU = R.alloc(16)
        for nt in range(4):
            for e in range(2):
                I(f'v_lshlrev_b32 v{XU + 4 * nt + 2 * e}, 16, v{XR[nt] + e}\nv_and_b32 v{XU + 4 * nt + 2 * e + 1}, 0xffff0000, v{XR[nt] + e}')
        for i in range(0, 16, 2):
            I(f'v_pk_fma_f32 {vr(DA + i, 2)}, {vr(DA + i, 2)}, {vr(MV + i, 2)}, {vr(XU + i, 2)}')
        for nt in range(4): I(f'ds_read_b128 {vr(MV + 4 * nt, 4)}, v{vB} offset:{512 + 64 * nt}')
        for i in range(8): I(f'v_cvt_pk_bf16_f32 v{X1 + i}, v{DA + 2 * i}, v{DA + 2 * i + 1}')
        for nt in range(4): I(f'ds_read_b128 {vr(DA + 4 * nt, 4)}, v{vB} offset:{256 + 64 * nt}')
        sm, sq = R.alloc(), R.alloc()
        I(f'v_mov_b32 v{sm}, 0\nv_mov_b32 v{sq}, 0')
        for i in range(8): I(f'v_dot2c_f32_bf16 v{sm}, s{sONES}, v{X1 + i}\nv_dot2c_f32_bf16 v{sq}, v{X1 + i}, v{X1 + i}')
        s.stamp('dgemm')
        for i in range(8): I(f'v_lshlrev_b32 v{XU + 2 * i}, 16, v{X1 + i}\nv_and_b32 v{XU + 2 * i + 1}, 0xffff0000, v{X1 + i}')
        s.stats_exchange(ST1, sm, sq, 512)
        s.stamp('st1')
        g.wait_all(v=False, l=True)
        pr = R.alloc(4)
        I(f'v_mov_b32 v{pr}, v{sq}\nv_mov_b32 v{pr + 2}, v{sm}')
        for i in range(0, 16, 2):
            I(f'v_pk_fma_f32 {vr(XU + i, 2)}, {vr(XU + i, 2)}, {vr(pr, 2)}, {vr(pr + 2, 2)} op_sel_hi:[1,0,0]')
        for i in range(0, 16, 2):
            I(f'v_pk_fma_f32 {vr(XU + i, 2)}, {vr(XU + i, 2)}, {vr(MV + i, 2)}, {vr(DA + i, 2)}')
        for i in range(8): I(f'v_cvt_pk_bf16_f32 v{XU + i}, v{XU + 2 * i}, v{XU + 2 * i + 1}')
        I(f's_lshl_b32 s{sT0}, s{sJ}, 11\ns_add_u32 s{sT0}, s{sT0}, s{sFRG}\ns_add_u32 s{sA}, s{sT0}, {H2}')
        s.local_store(lambda f: I(f'buffer_store_dwordx4 {vr(XU, 4)}, v{vL16}, {srd(S_WS)}, s{sA} offen {f}\nbuffer_store_dwordx4 {vr(XU + 4, 4)}, v{vL16}, {srd(S_WS)}, s{sA} offen offset:1024 {f}'))
        s.group_flag(H2F)
        R.rel(pr, 4); R.rel(XU, 16); R.rel(DA, 16); R.rel(MV, 16)
        for r_ in XR: R.rel(r_, 2)
        s.stamp('h2flag')
        if s.stop == 'h2': return s.finish()
        toks = []
        for k in range(16):
            if k % 4 == 0: I(f's_add_u32 s{sT2}, s{sFRG}, {H2 + 1024 * k}')
            I(f'buffer_load_dwordx4 {vr(BF + 4 * k, 4)}, v{vL16}, {srd(S_WS)}, s{sT2} offen offset:{1024 * (k % 4)} sc1'); toks.append(g.vtok())
        for f in s.win_round(2, 3, R_H0A): f()
        tz3 = g.vtok()
        for f in s.win_round(1, 0, R_H1A): f()
        vE = R.alloc(3, align=1)
        I(f'v_lshrrev_b32 v{t0}, 2, v{vL}\nv_mul_u32_u24 v{t0}, 224, v{t0}\nv_and_b32 v{t1}, 3, v{vL}\nv_lshl_add_u32 v{vE}, v{t1}, 3, v{t0}\n'
          f'v_add_u32 v{vE + 1}, 0xe000, v{vE}\nv_add_u32 v{vE + 2}, 0x1c000, v{vE}')

        def ejobs(regions, acc, tk):
            jb = []
            for k in range(16):
                base = regions[k >> 2] + 7168 * (k & 3)
                sel = base // 0xe000; off = base - sel * 0xe000
                if off + 7168 > 65535: raise RuntimeError('offset')
                for ft in range(7):
                    jb.append(dict(addr=vE + sel, o1=off + 32 * ft, o2=off + 16 * 224 + 32 * ft, act=vr(BF + 4 * k, 4), vtok=tk[k] if tk else None,
                                   acc=acc + 4 * ft, first=(k == 0), wfirst=True))
            return jb
        Z2 = R.alloc(28)

        def mid2():
            g.wait(v=tz3); g.wait_all(v=False, l=True)
            I('s_barrier')
            for f in s.win_round(1, 1, R_TOP) + s.win_round(1, 2, R_H0B): f()
        mid2.fence = True
        s.gemm(ejobs([R_TOP, R_H0B, R_H1B, R_H0A], Z2, toks), hooks={56: mid2})
        I('s_barrier')
        s.stamp('z2gemm')
        s.gelu(Z2, 28)
        for i in range(14): I(f'v_cvt_pk_bf16_f32 v{Z2 + i}, v{Z2 + 2 * i}, v{Z2 + 2 * i + 1}')
        I(f'v_mov_b32 v{sm}, 0\nv_mov_b32 v{sq}, 0')
        for i in range(14): I(f'v_dot2c_f32_bf16 v{sm}, s{sONES}, v{Z2 + i}\nv_dot2c_f32_bf16 v{sq}, v{Z2 + i}, v{Z2 + i}')
        ZU = R.alloc(28)
        for i in range(14): I(f'v_lshlrev_b32 v{ZU + 2 * i}, 16, v{Z2 + i}\nv_and_b32 v{ZU + 2 * i + 1}, 0xffff0000, v{Z2 + i}')
        s.stamp('gelu2')
        s.stats_exchange(ST2, sm, sq, 896)
        s.stamp('st2')
        pr = R.alloc(4)
        I(f'v_mov_b32 v{pr}, v{sq}\nv_mov_b32 v{pr + 2}, v{sm}')
        I(f's_mul_i32 s{sT0}, s{sW}, 3584\ns_add_u32 s{sT0}, s{sT0}, {R_H0A}\nv_mul_u32_u24 v{vA}, 224, v{vL15}\nv_lshl_add_u32 v{vA}, v{vGQ}, 3, v{vA}\nv_add_u32 v{vA}, s{sT0}, v{vA}')
        for ft in range(7):
            for e in range(2):
                i = 4 * ft + 2 * e
                I(f'v_pk_fma_f32 {vr(ZU + i, 2)}, {vr(ZU + i, 2)}, {vr(pr, 2)}, {vr(pr + 2, 2)} op_sel_hi:[1,0,0]')
            I(f'v_cvt_pk_bf16_f32 v{Z2 + 2 * ft}, v{ZU + 4 * ft}, v{ZU + 4 * ft + 1}\nv_cvt_pk_bf16_f32 v{Z2 + 2 * ft + 1}, v{ZU + 4 * ft + 2}, v{ZU + 4 * ft + 3}\n'
              f'ds_write_b64 v{vA}, {vr(Z2 + 2 * ft, 2)} offset:{32 * ft}')
        I(f'v_and_b32 v{t0}, 1, v{vGQ}\nv_lshlrev_b32 v{t0}, 3, v{t0}\nv_bfe_u32 v{t1}, v{vL}, 2, 2\nv_add_u32 v{t0}, v{t0}, v{t1}\nv_mul_u32_u24 v{t0}, 224, v{t0}\n'
          f'v_and_b32 v{t1}, 3, v{vL}\nv_lshl_add_u32 v{t0}, v{t1}, 3, v{t0}\nv_add_u32 v{t1}, s{sT0}, v{t0}\nv_lshrrev_b32 v{t2}, 5, v{vL}\nv_lshl_add_u32 v{t0}, v{t2}, 5, v{t1}')
        g.wait_all(v=False, l=True)
        for p in range(4):
            ad = t0 if p < 3 else t1
            I(f'ds_read_b64_tr_b16 {vr(ZU + 4 * p, 2)}, v{ad} offset:{64 * p}\nds_read_b64_tr_b16 {vr(ZU + 4 * p + 2, 2)}, v{ad} offset:{64 * p + 4 * 224}')
        I(f'v_and_b32 v{vA}, 31, v{vL}\nv_lshlrev_b32 v{vA}, 4, v{vA}\nv_lshl_add_u32 v{vA}, v{t2}, 16, v{vA}\n'
          f's_mul_i32 s{sT0}, s{sJ}, {7 * 65536}\ns_lshl_b32 s{sT1}, s{sG}, 11\ns_add_u32 s{sT0}, s{sT0}, s{sT1}\ns_lshl_b32 s{sT1}, s{sW}, 9\ns_add_u32 s{sT0}, s{sT0}, s{sT1}\ns_add_u32 s{sT0}, s{sT0}, {Z2N}')
        g.wait_all(v=False, l=True)
        for p in range(4):
            if p == 3: s.setexec(0xffffffff)
            I(f'buffer_store_dwordx4 {vr(ZU + 4 * p, 4)}, v{vA}, {srd(S_WS)}, s{sT0} offen sc1')
            if p < 3: I(f's_add_u32 s{sT0}, s{sT0}, {2 * 65536}')
        s.setexec(-1)
        tZ = g.vtok()
        for f in s.win_round(1, 3, R_H1B): f()
        tz13 = g.vtok()
        R.rel(pr, 4); R.rel(ZU, 28); R.rel(sm); R.rel(sq)
        s.stamp('z2st')
        Z1 = Z2
        sWC = sWQC

        def wout(chunks):
            for c in chunks: s.img_dma(S_WOUT, 0, (c, sW))
        g.wait(v=tZ)
        I('s_barrier')
        fa, fe = R.alloc(), R.alloc()

        def zflag():
            I(f's_lshl_b32 s{sT0}, s{sJ}, 5\ns_add_u32 s{sT0}, s{sT0}, s{sG}\ns_lshl_b32 s{sT0}, s{sT0}, 5\ns_add_u32 s{sT0}, s{sT0}, {ZF}\n'
              f'v_mov_b32 v{fe}, s{sE}\nv_mov_b32 v{fa}, 0\ns_mov_b64 exec, 1\nbuffer_store_dword v{fe}, v{fa}, {srd(S_WS)}, s{sT0} offen sc1\ns_mov_b64 exec, -1')
        g.branches([(f's_cmp_eq_u32 s{sW}, 0', zflag)])
        s.stamp('zflag')
        wout(list(range(0, 32, 4)) + [61, 93])

        def h4():
            g.wait_all(v=False, l=True); I('s_barrier'); wout(range(65, 93, 4))
        h4.fence = True

        def h12():
            g.wait(v=tz13); g.wait_all(v=False, l=True); I('s_barrier'); wout(list(range(32, 60, 4)) + [57])
        h12.fence = True
        s.gemm(ejobs([R_H1A, R_TOP, R_H0B, R_H1B], Z1, None), hooks={28: h4, 84: h12})
        I('s_barrier')
        wout([97, 101, 105, 108])
        R.rel(BF, 64); R.rel(vE, 3); R.rel(s.vWIN, 7)
        s.gelu(Z1, 28)
        s.stamp('z1')
        if s.stop == 'z': return s.finish()
        I(f's_lshl_b32 s{sT0}, s{sJ}, 5\ns_add_u32 s{sT0}, s{sT0}, s{sW}\ns_lshl_b32 s{sT0}, s{sT0}, 5\ns_add_u32 s{sA}, s{sT0}, {ZF}\nv_lshlrev_b32 v{fa}, 7, v{vL}')
        I(f's_mul_i32 s{sT0}, s{sJ}, {7 * 65536}\ns_lshl_b32 s{sT1}, s{sW}, 11\ns_add_u32 s{sT0}, s{sT0}, s{sT1}\ns_add_u32 s{sT0}, s{sT0}, {Z2N}')
        for xi in range(8): I(f's_lshl_b32 s{sSX + xi}, s{sSX + xi}, 4\ns_add_u32 s{sSX + xi}, s{sSX + xi}, s{sT0}')
        vZ = fe
        I(f'v_mov_b32 v{vZ}, v{vL16}')
        vRW = R.alloc(3, align=1); vRR = R.alloc()
        for u in range(1, 4):
            I(f's_add_u32 s{sT0}, s{sW}, {u}\ns_and_b32 s{sT0}, s{sT0}, 3\ns_mul_i32 s{sT0}, s{sT0}, 3072\ns_add_u32 s{sT0}, s{sT0}, {L_RED + 1024 * (u - 1)}\nv_add_u32 v{vRW + u - 1}, s{sT0}, v{vL16}')
        I(f's_mul_i32 s{sT0}, s{sW}, 3072\ns_add_u32 s{sT0}, s{sT0}, {L_RED}\nv_add_u32 v{vRR}, s{sT0}, v{vL16}')
        s.flag_poll(fa, 8, f's{sA}')
        s.stamp('zgot')
        RES = R.alloc(28); TA = R.alloc(24); RD = R.alloc(12)
        NR = 28; RG = [R.alloc(4) for _ in range(NR)]; ft_ = []

        def fload(i):
            p, k = divmod(i, 16)
            if k == 0 and p > 0: I(f'v_add_u32 v{vZ}, 0x10000, v{vZ}')
            I(f'buffer_load_dwordx4 {vr(RG[i % NR], 4)}, v{vZ}, {srd(S_WS)}, s{sSX + (k >> 1)} offen offset:{1024 * (k & 1)} sc1'); ft_.append(g.vtok())
        for i in range(NR - 1): fload(i)

        def red_write(p):
            for u in range(1, 4): I(f'ds_write_b128 v{vRW + u - 1}, {vr(TA + 12 * (p & 1) + 4 * (u - 1), 4)} offset:{12288 * (p & 1)}')

        def red_read(p):
            for u in range(3): I(f'ds_read_b128 {vr(RD + 4 * u, 4)}, v{vRR} offset:{12288 * (p & 1) + 1024 * u}')

        def red_add(p):
            for u in range(3):
                for e in (0, 2): I(f'v_pk_add_f32 {vr(RES + 4 * p + e, 2)}, {vr(RES + 4 * p + e, 2)}, {vr(RD + 4 * u + e, 2)}')
        for i in range(112):
            p, k = divmod(i, 16)
            if i + NR - 1 < 112: fload(i + NR - 1)
            if p > 0:
                if k == 2: red_write(p - 1)
                if k == 6: g.wait_all(v=False, l=True); I('s_barrier'); red_read(p - 1)
                if k == 10: g.wait_all(v=False, l=True); red_add(p - 1)
            g.wait(v=ft_[i])
            for u in range(4):
                acc = vr(RES + 4 * p, 4) if u == 0 else vr(TA + 12 * (p & 1) + 4 * (u - 1), 4)
                s.mf16(acc, vr(RG[i % NR], 4), ar((u * 16 + k) * 4, 4), '0' if k == 0 else None)
        red_write(6)
        I(f'v_lshlrev_b32 v{vBS}, 16, v{vBS}')
        g.wait_all(v=False, l=True); I('s_barrier'); red_read(6)
        for r_ in RG: R.rel(r_, 4)
        bp = R.alloc(2)
        I(f'v_mov_b32 v{bp}, v{vBS}')

        def ymul(p):
            for e in (0, 2):
                r_ = vr(RES + 4 * p + e, 2)
                I(f'v_pk_add_f32 {r_}, {r_}, {vr(bp, 2)} op_sel_hi:[1,0]\nv_pk_mul_f32 {r_}, {r_}, {vr(Z1 + 4 * p + e, 2)}')
            I(f'v_cvt_pk_bf16_f32 v{Z1 + 2 * p}, v{RES + 4 * p}, v{RES + 4 * p + 1}\nv_cvt_pk_bf16_f32 v{Z1 + 2 * p + 1}, v{RES + 4 * p + 2}, v{RES + 4 * p + 3}')
        for p in range(6): ymul(p)
        g.wait_all(v=False, l=True); red_add(6); ymul(6)
        s.stamp('fgemm')
        I(f's_mul_i32 s{sB}, s{sG}, {4 * 28672}\ns_mul_i32 s{sT0}, s{sW}, 28672\ns_add_u32 s{sB}, s{sB}, s{sT0}\ns_add_u32 s{sB}, s{sB}, {Y}\n'
          f's_lshr_b32 s{sT0}, s{sJ}, 1\ns_mul_i32 s{sT0}, s{sT0}, 7168\ns_add_u32 s{sT0}, s{sT0}, s{sB}\ns_and_b32 s{sT1}, s{sJ}, 1\ns_mul_i32 s{sT2}, s{sT1}, 3072\n'
          f's_add_u32 s{sA}, s{sT0}, s{sT2}\ns_lshl_b32 s{sT1}, s{sT1}, 3\ns_add_u32 s{sT0}, s{sT0}, s{sT1}\ns_add_u32 s{sT3}, s{sT0}, 6144')

        def yst(f):
            for i in range(3): I(f'buffer_store_dwordx4 {vr(Z1 + 4 * i, 4)}, v{vL16}, {srd(S_WS)}, s{sA} offen offset:{1024 * i} {f}')
            I(f'buffer_store_dwordx2 {vr(Z1 + 12, 2)}, v{vL16}, {srd(S_WS)}, s{sT3} offen {f}')
        s.local_store(yst)
        vI2 = R.alloc(4); MV = R.alloc(16)
        for nt in range(4): I(f'v_add_u32 v{vI2 + nt}, 0xe000, v{vIM + nt}')
        for nt in range(4): I(f'ds_read_b128 {vr(MV + 4 * nt, 4)}, v{vB} offset:{768 + 64 * nt}')
        s.group_flag(YF)
        for x_, n_ in ((RES, 28), (TA, 24), (RD, 12), (bp, 2), (Z1, 28), (vRW, 3), (vRR, 1), (fa, 1), (fe, 1)): R.rel(x_, n_)
        s.stamp('yflag')
        YB = [R.alloc(4) for _ in range(28)]; toks = []
        for k in range(28):
            if k % 4 == 0: I(f's_add_u32 s{sT2}, s{sB}, {1024 * k}')
            I(f'buffer_load_dwordx4 {vr(YB[k], 4)}, v{vL16}, {srd(S_WS)}, s{sT2} offen offset:{1024 * (k % 4)} sc1'); toks.append(g.vtok())
        GA = R.alloc(16); XU = R.alloc(16)
        for i in range(8): I(f'v_lshlrev_b32 v{XU + 2 * i}, 16, v{X1 + i}\nv_and_b32 v{XU + 2 * i + 1}, 0xffff0000, v{X1 + i}')
        jobs = []
        for k in range(28):
            P_, i = divmod(k, 7)
            ta, tb = (14 * P_ + 2 * i, 14 * P_ + 2 * i + 1) if i < 3 else ((14 * P_ + 2 * i + 1, 14 * P_ + 2 * i + 2) if i < 6 else (14 * P_ + 6, 14 * P_ + 13))
            hi = P_ >= 2
            for nt in range(4):
                jobs.append(dict(addr=(vI2 if hi else vIM) + nt, o1=2048 * ta - (0xe000 if hi else 0), o2=2048 * tb - (0xe000 if hi else 0),
                                 act=vr(YB[k], 4), vtok=toks[k], acc=GA + 4 * nt, first=(k == 0), wfirst=True))
        s.gemm(jobs)
        for i in range(0, 16, 2):
            I(f'v_pk_fma_f32 {vr(GA + i, 2)}, {vr(GA + i, 2)}, {vr(MV + i, 2)}, {vr(XU + i, 2)}')
        for nt in range(4):
            I(f'v_cvt_pk_bf16_f32 v{GA + 4 * nt}, v{GA + 4 * nt}, v{GA + 4 * nt + 1}\nv_cvt_pk_bf16_f32 v{GA + 4 * nt + 1}, v{GA + 4 * nt + 2}, v{GA + 4 * nt + 3}\n'
              f'buffer_store_dwordx2 {vr(GA + 4 * nt, 2)}, v{vXA}, {srd(S_OUT)}, s{sROW} offen offset:{32 * nt}')
        return s.finish()


HEADER = open(os.path.join(os.path.dirname(os.path.abspath(__file__)), '..', 'cdna_kernels', NAME + '.s.ref')).read().split('; Override launch')[0]


def render(**kw):
    k = K(**kw)
    k.build()
    k.g.pad_hazards()
    fixed, left, size = k.g.align8()
    txt = HEADER + f'; @launch grid=(256,1,1) block=(256,1,1) lds={LDS_BYTES}\n'
    txt += f'.amdgcn_target "amdgcn-amd-amdhsa--gfx950"\n.text\n.globl {NAME}_kernel\n.p2align 8\n.type {NAME}_kernel,@function\n{NAME}_kernel:\n'
    txt += k.g.text()
    txt += f'''.section .rodata,"a"
.p2align 6
.amdhsa_kernel {NAME}_kernel
  .amdhsa_next_free_vgpr 512
  .amdhsa_next_free_sgpr 102
  .amdhsa_accum_offset 256
  .amdhsa_group_segment_fixed_size 0
  .amdhsa_kernarg_size 120
  .amdhsa_user_sgpr_count 2
  .amdhsa_user_sgpr_kernarg_segment_ptr 1
  .amdhsa_system_sgpr_workgroup_id_x 1
.end_amdhsa_kernel
'''
    return txt, k, (fixed, left, size)


if __name__ == '__main__':
    import argparse
    ap = argparse.ArgumentParser()
    ap.add_argument('-o', default=None); ap.add_argument('--stop', default=None); ap.add_argument('--stamps', action='store_true')
    ap.add_argument('--slow', action='store_true'); ap.add_argument('--mode', type=int, default=None)
    a = ap.parse_args()
    txt, k, info = render(stop=a.stop, stamps=a.stamps, force_slow=a.slow, force_mode=a.mode)
    out = a.o or os.path.join(os.path.dirname(os.path.abspath(__file__)), '..', 'cdna_kernels', NAME + '.s')
    open(out, 'w').write(txt)
    if a.stamps: open(out + '.names', 'w').write(' '.join(k.names))
    print('wrote', out, 'aligned/left/bytes', info, 'instrs', sum(isinstance(i, Ins) for i in k.g.items))
```

```python
import sys, os, struct
sys.path.insert(0, os.path.dirname(os.path.abspath(__file__)))
from asmlib import *

NAME = 'adaLN_cond__grouped_kv_mqa__mixer_gmlp__prompt'

EPOCH = 0x0
KVG = 0x1000
ZF = 0x2000
MOD2 = 0x4000
KV = 0x10000
SET = 0x40000
XCCW, MODA, KVL, GFL = 0, 4096, 20480, 21504
HF, OF, H2F, YF = 0, 512, 1024, 1536
MODB = 0x80000
H = 0x100000
GRP = 0x400000
ST1, ST2 = 114688, 122880
Z2N = 0x1000000
DBG = 0x1400000
WSSZ = 0x1800000
REC = 2080
HALF = 32 * REC

L_WQ = 0
L_WK = 65536
L_WV = 81920
L_MOD = 98304
L_MOD2 = 133120
L_HROW = 141312
L_QX = 149632
L_SILU = 157824
L_PART = 158848
L_PART2 = 159872
L_STAT = 160128
L_MODV = 161792
R_TOP = 133120
R_H0A = 0
R_H0B = 33280
R_H1A = 66560
R_H1B = 99840
L_RED = 114688
LDS_BYTES = 163840

S_X, S_WQ, S_WK, S_WV, S_WO, S_WIN, S_WSP, S_BSP, S_WOUT, S_C, S_WMOD, S_OUT, S_WS = [4 + 4 * i for i in range(13)]
sW, sXs, sR, sJ, sG, sE, sMODE, sLIM, sCNT = 56, 57, 58, 59, 60, 61, 62, 63, 64
sT0, sT1, sT2, sT3 = 65, 66, 67, 68
sONES = 69
sM0, sM1 = 70, 72
sROW = 74
sFRG = 75
sSX = 76
sKM = 84
sA, sB = 85, 86
sSET, sGF, sGRP, sFR2 = 100, 101, 3, 19
sAL = 12
sSTMP = 96


def srd(n): return f's[{n}:{n+3}]'
def vr(b, n=1): return f'v{b}' if n == 1 else f'v[{b}:{b+n-1}]'
def ar(b, n=1): return f'a{b}' if n == 1 else f'a[{b}:{b+n-1}]'
def f2u(x): return struct.unpack('<I', struct.pack('<f', x))[0]
def fl(x): return hex(f2u(x))

LOG2E = 1.4426950408889634
BOUND_T = 48.0
SPIN = 200000


class K:
    def __init__(s, stop=None, stamps=False, force_slow=False, force_mode=None, opt=()):
        s.opt = set(opt)
        s.g = Gen(); s.R = Regs(256); s.stop = stop; s.stamps = stamps
        s.force_slow = force_slow; s.force_mode = force_mode
        s.nst = 0; s.names = []

    def I(s, t): s.g.I(t)

    def stamp(s, name, hard=False):
        if not s.stamps: return
        i = s.nst; s.nst += 1; s.names.append(name)
        if i > 0:
            s.g.U(f'v_writelane_b32 v{s.vST}, s{sSTMP + 2 * ((i - 1) & 1)}, {i - 1}')
        s.g.U(f's_memtime s[{sSTMP + 2 * (i & 1)}:{sSTMP + 2 * (i & 1) + 1}]')
        if hard: s.g.U('s_waitcnt lgkmcnt(0)')

    def mf16(s, d, a, b, c=None):
        s.I(f'v_mfma_f32_16x16x32_bf16 {d}, {a}, {b}, {c if c is not None else d}')

    def mf32(s, d, a, b, c=None):
        s.I(f'v_mfma_f32_32x32x16_bf16 {d}, {a}, {b}, {c if c is not None else d}')

    def setexec(s, mask):
        if mask == -1: s.I('s_mov_b64 exec, -1'); return
        lo, hi = mask & 0xffffffff, mask >> 32
        if hi == 0 and lo <= 64: s.I(f's_mov_b64 exec, {lo}')
        elif hi == 0 and lo < 0x80000000: s.I(f's_mov_b64 exec, {hex(lo)}')
        else: s.I(f's_mov_b32 exec_lo, {hex(lo)}\ns_mov_b32 exec_hi, {hex(hi)}')

    def local_store(s, fn):
        s.g.branches([(f's_cmp_eq_u32 s{sMODE}, 1', lambda: fn('')), (None, lambda: fn('sc1'))])

    def poll(s, loads, check, mask=None):
        g = s.g; L = g.label('poll'); D = g.label('pdone')
        if mask is not None: s.setexec(mask)
        s.I(f's_mov_b32 s{sCNT}, s{sLIM}')
        s.I(L + ':')
        loads()
        g.wait_all(v=True, l=False, force=True)
        check()
        s.I(f's_cbranch_vccz {D}\ns_sub_u32 s{sCNT}, s{sCNT}, 1\ns_cmp_lg_u32 s{sCNT}, 0\ns_cbranch_scc1 {L}\ns_mov_b32 s{sLIM}, 1')
        s.I(D + ':')
        if mask is not None: s.setexec(-1)

    def flag_poll(s, vaddr, n, soff='0'):
        t = s.R.alloc()
        s.poll(lambda: s.I(f'buffer_load_dword v{t}, v{vaddr}, {srd(S_WS)}, {soff} offen sc1'),
               lambda: s.I(f'v_cmp_ne_u32 vcc, s{sE}, v{t}'), mask=(1 << n) - 1)
        s.R.rel(t)

    def group_flag(s, base, window=(), vtok=None):
        g = s.g; R = s.R
        a = R.alloc(); e = R.alloc(); p = R.alloc()
        s.I(f's_add_u32 s{sT3}, s{sGF}, {base}\ns_lshl_b32 s{sT1}, s{sJ}, 2\ns_add_u32 s{sT1}, s{sT1}, s{sT3}')
        s.I(f'v_mov_b32 v{e}, s{sE}\nv_mov_b32 v{a}, s{sT1}\nv_lshlrev_b32 v{p}, 2, v{s.vL}')
        g.wait(v=vtok if vtok is not None else g.vtok(), l=g.ltok())
        s.I('s_barrier')

        def raise_():
            s.setexec(1)
            s.local_store(lambda f: s.I(f'buffer_store_dword v{e}, v{a}, {srd(S_WS)}, 0 offen {f}'))
            s.setexec(-1)
        g.branches([(f's_cmp_eq_u32 s{sW}, 0', raise_)])
        for f in window: f()
        s.flag_poll(p, 8, f's{sT3}')
        R.rel(a); R.rel(e); R.rel(p)

    def xsum(s, v, op='v_add_f32', do16=True, do32=True):
        t = s.R.alloc()
        if do16:
            s.I(f'v_mov_b32 v{t}, v{v}\nv_permlane16_swap_b32 v{v}, v{t}\n{op} v{v}, v{v}, v{t}')
        if do32:
            s.I(f'v_mov_b32 v{t}, v{v}\nv_permlane32_swap_b32 v{v}, v{t}\n{op} v{v}, v{v}, v{t}')
        s.R.rel(t)

    def xsum2(s, a, b):
        t = s.R.alloc(); u = s.R.alloc()
        for p in ('16', '32'):
            s.I(f'v_mov_b32 v{t}, v{a}\nv_mov_b32 v{u}, v{b}\nv_permlane{p}_swap_b32 v{a}, v{t}\nv_permlane{p}_swap_b32 v{b}, v{u}\n'
                f'v_add_f32 v{a}, v{a}, v{t}\nv_add_f32 v{b}, v{b}, v{u}')
        s.R.rel(t); s.R.rel(u)

    def rowred(s, regs, op, steps=4):
        pats = ['quad_perm:[1,0,3,2]', 'quad_perm:[2,3,0,1]', 'row_half_mirror', 'row_mirror'][:steps]
        for p in pats:
            for v in regs:
                s.I(f'{op}_dpp v{v}, v{v}, v{v} {p} row_mask:0xf bank_mask:0xf')

    def meanstd(s, sm, sq, n):
        t = s.R.alloc()
        s.I(f'v_mul_f32 v{sm}, {fl(1.0 / n)}, v{sm}\nv_mul_f32 v{t}, v{sm}, v{sm}\ns_mov_b32 s{sT0}, {fl(1.0 / n)}\n'
            f'v_fma_f32 v{sq}, v{sq}, s{sT0}, -v{t}\nv_max_f32 v{sq}, 0, v{sq}\nv_add_f32 v{sq}, {fl(1e-5)}, v{sq}\n'
            f'v_rsq_f32 v{sq}, v{sq}\nv_mul_f32_e64 v{sm}, -v{sm}, v{sq}')
        s.R.rel(t)

    def gemm(s, jobs, look=7, wn=4, hooks=None, side=None):
        g = s.g; R = s.R; hooks = hooks or {}; side = side or {}
        ring = R.alloc(4 * (look + 1)); toks = []

        def issue(i):
            j = jobs[i]; b = ring + 4 * (i % (look + 1))
            s.I(f'ds_read_b64_tr_b16 {vr(b, 2)}, v{j["addr"]} offset:{j["o1"]}\nds_read_b64_tr_b16 {vr(b + 2, 2)}, v{j["addr"]} offset:{j["o2"]}')
            toks.append(g.ltok())
        n = len(jobs); nxt = 0
        for i in range(n):
            if i in hooks: hooks[i]()
            lim = min([h for h in hooks if h > i and getattr(hooks[h], 'fence', False)] + [n])
            while nxt < min(i + look, lim) or nxt <= i:
                issue(nxt); nxt += 1
            j = jobs[i]
            vt = j.get('vtok')
            if callable(vt): vt = vt()
            upto = min(i + wn - 1, nxt - 1)
            if toks[i] > g.lg_done: g.wait(l=toks[upto], v=vt)
            elif vt is not None: g.wait(v=vt)
            b = vr(ring + 4 * (i % (look + 1)), 4)
            acc = vr(j['acc'], 4)
            a_, b_ = (b, j['act']) if j['wfirst'] else (j['act'], b)
            s.mf16(acc, a_, b_, '0' if j['first'] else None)
            for f in side.get(i, []): f()
        R.rel(ring, 4 * (look + 1))

    def act_loads(s, regs, sbase, base, n, per, pre, side):
        tk = {}
        ns = (n + 3) // 4
        for q in range(ns): s.I(f's_add_u32 s{sAL + q}, s{sbase}, {base + 4096 * q}')

        def ld(k):
            s.I(f'buffer_load_dwordx4 {vr(regs[k], 4)}, v{s.vL16}, {srd(S_WS)}, s{sAL + k // 4} offen offset:{1024 * (k % 4)} sc1'); tk[k] = s.g.vtok()
        for k in range(n):
            if k < pre: ld(k)
            else: side.setdefault(per * (k - pre), []).append(lambda k=k: ld(k))
        return [(lambda k=k: tk[k]) for k in range(n)]

    def spread(s, side, pairs, start, step):
        i = start
        for pre, op in pairs:
            side.setdefault(i, []).append(pre); side.setdefault(i + 1, []).append(op); i += step
        return i

    def gelu_ops(s, base, n, packed=True):
        R = s.R
        k1 = -2.0 * 0.7978845608028654 * LOG2E
        k3 = k1 * 0.044715
        kk = R.alloc(2); t = R.alloc(4)
        s.I(f'v_mov_b32 v{kk}, {fl(k1)}\nv_mov_b32 v{kk + 1}, {fl(k1)}\ns_mov_b32 s{sM1}, {fl(k3)}\ns_mov_b32 s{sM1 + 1}, {fl(k3)}')
        ops = []
        for i in range(0, n, 4):
            if not packed:
                Z = [base + i + q for q in range(4)]; T = [t + q for q in range(4)]
                ops += [f'v_mul_f32 v{b}, v{a}, v{a}' for a, b in zip(Z, T)] + [f'v_fma_f32 v{b}, v{b}, s{sM1}, v{kk}' for b in T]
                ops += [f'v_mul_f32 v{b}, v{b}, v{a}' for a, b in zip(Z, T)] + [f'v_exp_f32 v{b}, v{b}' for b in T]
                ops += [f'v_add_f32 v{b}, 1.0, v{b}' for b in T] + [f'v_rcp_f32 v{b}, v{b}' for b in T] + [f'v_mul_f32 v{a}, v{a}, v{b}' for a, b in zip(Z, T)]
                continue
            z0, z1 = vr(base + i, 2), vr(base + i + 2, 2); t0, t1 = vr(t, 2), vr(t + 2, 2)
            ops += [f'v_pk_mul_f32 {t0}, {z0}, {z0}', f'v_pk_mul_f32 {t1}, {z1}, {z1}',
                    f'v_pk_fma_f32 {t0}, {t0}, s[{sM1}:{sM1 + 1}], {vr(kk, 2)}', f'v_pk_fma_f32 {t1}, {t1}, s[{sM1}:{sM1 + 1}], {vr(kk, 2)}',
                    f'v_pk_mul_f32 {t0}, {t0}, {z0}', f'v_pk_mul_f32 {t1}, {t1}, {z1}']
            ops += [f'v_exp_f32 v{t + q}, v{t + q}' for q in range(4)]
            ops += [f'v_pk_add_f32 {t0}, {t0}, 1.0 op_sel_hi:[1,0]', f'v_pk_add_f32 {t1}, {t1}, 1.0 op_sel_hi:[1,0]']
            ops += [f'v_rcp_f32 v{t + q}, v{t + q}' for q in range(4)]
            ops += [f'v_pk_mul_f32 {z0}, {z0}, {t0}', f'v_pk_mul_f32 {z1}, {z1}, {t1}']

        def rel(): R.rel(t, 4); R.rel(kk, 2)
        return ops, rel

    def gelu(s, base, n):
        ops, rel = s.gelu_ops(base, n)
        for o in ops: s.I(o)
        rel()

    def stats_exchange(s, base, sm, sq, n, window=()):
        g = s.g; R = s.R
        s.xsum2(sm, sq)
        gr = R.alloc(4); a = R.alloc(); q = R.alloc(8)
        s.I(f'v_mov_b32 v{gr}, v{sm}\nv_mov_b32 v{gr + 1}, v{sq}\nv_mov_b32 v{gr + 2}, s{sE}\nv_mov_b32 v{gr + 3}, s{sE}')
        s.I(f's_lshl_b32 s{sT1}, s{sW}, 8\ns_add_u32 s{sT0}, s{sGRP}, s{sT1}\ns_add_u32 s{sA}, s{sT0}, {base}\n'
            f's_lshl_b32 s{sT1}, s{sJ}, 10\ns_add_u32 s{sB}, s{sT1}, s{sA}')
        s.setexec(0xffff)
        s.local_store(lambda f: s.I(f'buffer_store_dwordx4 {vr(gr, 4)}, v{s.vL16}, {srd(S_WS)}, s{sB} offen {f}'))
        s.setexec(-1)
        s.I(f'v_lshlrev_b32 v{a}, 11, v{s.vGQ}\nv_lshl_add_u32 v{a}, v{s.vL15}, 4, v{a}')
        for f in window: f()

        def loads():
            s.I(f'buffer_load_dwordx4 {vr(q, 4)}, v{a}, {srd(S_WS)}, s{sA} offen sc1\n'
                f'buffer_load_dwordx4 {vr(q + 4, 4)}, v{a}, {srd(S_WS)}, s{sA} offen offset:1024 sc1')

        def check():
            s.I(f'v_xor_b32 v{q + 2}, s{sE}, v{q + 2}\nv_xor_b32 v{q + 6}, s{sE}, v{q + 6}\nv_or_b32 v{q + 2}, v{q + 2}, v{q + 6}\nv_cmp_ne_u32 vcc, 0, v{q + 2}')
        s.poll(loads, check)
        s.I(f'v_add_f32 v{sm}, v{q}, v{q + 4}\nv_add_f32 v{sq}, v{q + 1}, v{q + 5}')
        s.xsum2(sm, sq)
        s.meanstd(sm, sq, n)
        R.rel(gr, 4); R.rel(a); R.rel(q, 8)

    def dma(s, vaddr, sd, soff, m0, off=0, fl_=''):
        if m0 is not None: s.I(f's_mov_b32 m0, {m0}' if isinstance(m0, int) else m0)
        o = f' offset:{off}' if off else ''
        s.I(f'buffer_load_dwordx4 v{vaddr}, {srd(sd)}, {soff} offen{o} {fl_} lds')

    def img_pair(s, sd, lds, c, ssrc, slds):
        return (lambda: s.I(f's_add_u32 m0, s{slds}, {lds + 1024 * c}\ns_add_u32 s{sT0}, s{ssrc}, {8192 * c}'),
                lambda: s.dma(s.vSWZ, sd, f's{sT0}', None))

    def win_pairs(s, part, rd, region):
        out = []
        for q in range(7):
            def pre(q=q):
                t = f's_add_u32 m0, s{s.sW7}, {region + 1024 * q}'
                if q == 0: t += f'\ns_add_u32 s{sT2}, s{s.sWIN}, {rd * 4 * 32 * 3584 + (1792 if part == 2 else 0)}'
                s.I(t)
            out.append((pre, lambda q=q: s.dma(s.vWIN + q, S_WIN, f's{sT2}', None)))
        return out

    def flat(s, pairs):
        return [f for p in pairs for f in p]

    def finish(s):
        g = s.g
        if s.stamps:
            s.stamp('end')
            i = s.nst
            s.I('s_waitcnt lgkmcnt(0)')
            g.U(f'v_writelane_b32 v{s.vST}, s{sSTMP + 2 * ((i - 1) & 1)}, {i - 1}')
            g.U(f's_memrealtime s[{sSTMP}:{sSTMP + 1}]')
            s.I('s_waitcnt lgkmcnt(0)')
            g.U(f'v_writelane_b32 v{s.vST}, s{sSTMP}, 63')
            a = s.R.alloc()
            s.I(f's_lshl_b32 s{sT0}, s2, 2\ns_add_u32 s{sT0}, s{sT0}, s{sW}\ns_lshl_b32 s{sT0}, s{sT0}, 8\ns_add_u32 s{sT0}, s{sT0}, {DBG}\n'
                f'v_lshlrev_b32 v{a}, 2, v{s.vL}\nbuffer_store_dword v{s.vST}, v{a}, {srd(S_WS)}, s{sT0} offen')
        s.I('L_end:\ns_endpgm\nL_code_end:')

    def build(s):
        g = s.g; R = s.R; I = s.I
        v0 = R.alloc()
        O, H2 = (0x400000, 0x800000) if 'sep' in s.opt else (0, 0)
        s.vL, s.vL15, s.vGQ, s.vL16, s.vSWZ = [R.alloc() for _ in range(5)]
        vL, vL15, vGQ, vL16, vSWZ = s.vL, s.vL15, s.vGQ, s.vL16, s.vSWZ
        I('L_code_start:\ns_cmp_ge_u32 s2, 256\ns_cbranch_scc1 L_end')
        if s.stamps:
            s.vST = R.alloc()
            g.U(f's_memrealtime s[{sSTMP + 2}:{sSTMP + 3}]')
            I(f'v_mov_b32 v{s.vST}, 0\ns_waitcnt lgkmcnt(0)')
            g.U(f'v_writelane_b32 v{s.vST}, s{sSTMP + 2}, 62')
            s.stamp('start')
        for sd, off in ((S_WMOD, 88), (S_C, 80), (S_X, 0), (S_WS, 112), (S_WK, 16), (S_WV, 24), (S_WQ, 8)):
            I(f's_load_dwordx2 s[{sd}:{sd + 1}], s[0:1], {off}')
        sizes = {S_X: 2097152, S_WQ: 524288, S_WK: 16384, S_WV: 16384, S_WO: 524288, S_WIN: 1835008, S_WSP: 8388608, S_BSP: 4096,
                 S_WOUT: 917504, S_C: 1024, S_WMOD: 3145728, S_OUT: 2097152, S_WS: WSSZ}
        t0, t1, t2, vA, vB = [R.alloc() for _ in range(5)]
        vK, vV0, vV1, vXA, vBS = [R.alloc() for _ in range(5)]
        s.vWIN = R.alloc(7, align=1); vSP = R.alloc(4, align=1)
        XR = [R.alloc(2) for _ in range(4)]; M2G = R.alloc(2)
        while R.used() < 40 and not all(R.free[40:]): raise RuntimeError('layout')
        QA = R.take(40, 16)
        vJ = XR[3] + 1
        I(f'v_lshrrev_b32 v{t0}, 6, v0\nv_and_b32 v{vL}, 63, v0\nv_readfirstlane_b32 s{sW}, v{t0}\n'
          f's_and_b32 s{sXs}, s2, 7\ns_lshr_b32 s{sR}, s2, 3\ns_and_b32 s{sJ}, s{sR}, 7\ns_lshr_b32 s{sT0}, s{sR}, 3\n'
          f's_lshl_b32 s{sG}, s{sXs}, 2\ns_add_u32 s{sG}, s{sG}, s{sT0}')

        def codepf():
            I(f's_getpc_b64 s[{sM0}:{sM0 + 1}]\nL_pc:\ns_lshl_b32 s{sT0}, s{sR}, 13\nv_lshlrev_b32 v{t1}, 7, v{vL}\nv_add_u32 v{t1}, s{sT0}, v{t1}\n'
              f'v_min_u32 v{t1}, L_code_end-L_pc-4, v{t1}\nglobal_load_dword v{vJ}, v{t1}, s[{sM0}:{sM0 + 1}]')
        g.branches([(f's_lshr_b32 s{sT1}, s{sR}, 3\ns_sub_u32 s{sT2}, 3, s{sW}\ns_or_b32 s{sT1}, s{sT1}, s{sT2}\ns_cmp_eq_u32 s{sT1}, 0', codepf)])
        for sd in (S_WMOD, S_C, S_X, S_WS, S_WK, S_WV, S_WQ):
            I(f's_mov_b32 s{sd + 2}, {hex(sizes[sd])}\ns_mov_b32 s{sd + 3}, 0x20000')
        I(f'v_lshlrev_b32 v{vL16}, 4, v{vL}')
        vT4 = R.alloc(); vMA = R.alloc(); vXS = R.alloc(); vR4 = R.alloc(); vC8 = R.alloc()
        I(f'v_and_b32 v{vL15}, 15, v{vL}\nv_lshrrev_b32 v{vGQ}, 4, v{vL}\nv_lshlrev_b32 v{vT4}, 2, v0')
        I(f'v_lshlrev_b32 v{t0}, 1, v{vGQ}\nv_and_b32 v{t1}, 7, v{vL}\nv_xor_b32 v{t0}, v{t0}, v{t1}\nv_lshlrev_b32 v{t0}, 4, v{t0}\n'
          f'v_lshrrev_b32 v{t1}, 3, v{vL}\nv_lshl_add_u32 v{vSWZ}, v{t1}, 10, v{t0}\nv_mul_u32_u24 v{t1}, 6144, v{t1}\nv_add_u32 v{vMA}, v{t0}, v{t1}')
        I(f'v_lshrrev_b32 v{t0}, 5, v{vL}\nv_lshlrev_b32 v{t0}, 10, v{t0}\nv_and_b32 v{t1}, 31, v{vL}\nv_lshl_add_u32 v{vXS}, v{t1}, 5, v{t0}')
        s.sJ128 = 87; s.sWIN = 88; s.sW7 = 89; sR8 = 90; sIS = 91; sKVO = 92; sREC = 93; sIL = 94; sMA = 95
        I(f's_lshl_b32 s{s.sJ128}, s{sJ}, 7\n'
          f's_lshl_b32 s{sR8}, s{sG}, 6\ns_lshl_b32 s{sT0}, s{sJ}, 3\ns_add_u32 s{sR8}, s{sR8}, s{sT0}\ns_lshl_b32 s{sR8}, s{sR8}, 10\n'
          f's_and_b32 s{sMA}, s{sR}, 1\ns_lshl_b32 s{sMA}, s{sMA}, 2\ns_add_u32 s{sMA}, s{sMA}, s{sW}\ns_mul_i32 s{sB}, s{sMA}, {64 * 6144}\n'
          f's_lshr_b32 s{sT0}, s{sR}, 1\ns_lshl_b32 s{sT0}, s{sT0}, 7\ns_add_u32 s{sB}, s{sB}, s{sT0}\n'
          f's_lshl_b32 s{sT3}, s{sW}, 13\ns_add_u32 s{sT3}, s{sT3}, {L_MOD}')
        g.wait_all(v=False, l=True)
        g.U(f's_load_dword s{sE}, s[{S_WS}:{S_WS + 1}], {EPOCH}')
        s.stamp('karg')
        vC = R.alloc()
        I(f'buffer_load_dword v{vC}, v{vT4}, {srd(S_C)}, 0 offen'); tC = g.vtok()
        for i in range(8):
            I(f's_add_u32 m0, s{sT3}, {i * 1024}\ns_add_u32 s{sT0}, s{sB}, {i * 8 * 6144}')
            s.dma(vMA, S_WMOD, f's{sT0}', None)
        tMOD = g.vtok()
        XS = R.alloc(8); XC = R.alloc(16)
        I(f's_lshl_b32 s{sT0}, s{sW}, 11\ns_add_u32 s{sT0}, s{sT0}, s{sR8}\ns_add_u32 s{sT1}, s{sR8}, 4096')
        I(f'buffer_load_dwordx4 {vr(XS, 4)}, v{vXS}, {srd(S_X)}, s{sT0} offen\nbuffer_load_dwordx4 {vr(XS + 4, 4)}, v{vXS}, {srd(S_X)}, s{sT0} offen offset:16')
        tX = g.vtok()
        for sd, off in ((S_WO, 32), (S_WIN, 48), (S_WSP, 56), (S_BSP, 64), (S_WOUT, 72), (S_OUT, 96)):
            g.U(f's_load_dwordx2 s[{sd}:{sd + 1}], s[0:1], {off}')
        I(f'v_lshrrev_b32 v{vR4}, 2, v{vL}\nv_and_b32 v{vC8}, 3, v{vL}\nv_lshlrev_b32 v{vC8}, 3, v{vC8}\n'
          f's_lshl_b32 s{sSET}, s{sXs}, 15\ns_add_u32 s{sSET}, s{sSET}, {SET}\ns_and_b32 s{sGF}, s{sG}, 3\ns_lshl_b32 s{sGF}, s{sGF}, 7\ns_add_u32 s{sGF}, s{sGF}, s{sSET}\ns_add_u32 s{sGF}, s{sGF}, {GFL}\n'
          f's_lshl_b32 s{sT0}, s{sG}, 1\ns_lshr_b32 s{sT2}, s{sJ}, 2\ns_add_u32 s{sT0}, s{sT0}, s{sT2}\ns_mul_i32 s{sREC}, s{sT0}, {REC}\ns_add_u32 s{sREC}, s{sREC}, {KV}')

        def lo_loads():
            I(f'v_lshlrev_b32 v{vA}, 3, v0')
            for i in range(8):
                I(f'buffer_load_dwordx2 {vr(XC + 2 * i, 2)}, v{vA}, {srd(S_X)}, s{sR8 if i < 4 else sT1} offen offset:{(i & 3) * 1024}')

        def hi_touch():
            I(f'v_lshlrev_b32 v{vA}, 7, v{vL}')

            def w2():
                I(f's_mul_i32 s{sT0}, s{sR}, 768\ns_add_u32 s{sT0}, s{sT0}, s{sSET}\nv_add_u32 v{t0}, s{sT0}, v{vA}\n'
                  f's_and_b32 s{sT0}, s{sJ}, 3\ns_mul_i32 s{sT0}, s{sT0}, 640\ns_add_u32 s{sT0}, s{sT0}, s{sREC}\ns_sub_u32 s{sT0}, s{sT0}, 1024\nv_add_u32 v{t1}, s{sT0}, v{vA}\n'
                  f'v_cmp_gt_u32 vcc, 8, v{vL}\nv_cndmask_b32 v{t0}, v{t1}, v{t0}, vcc\n'
                  f's_lshl_b32 s{sT0}, s{sJ}, 5\ns_add_u32 s{sT0}, s{sT0}, s{sG}\ns_lshl_b32 s{sT0}, s{sT0}, 5\ns_add_u32 s{sT0}, s{sT0}, {ZF}\nv_writelane_b32 v{t0}, s{sT0}, 6\n'
                  f's_lshl_b32 s{sT0}, s{sXs}, 11\ns_lshl_b32 s{sT1}, s{sR}, 6\ns_add_u32 s{sT0}, s{sT0}, s{sT1}\ns_add_u32 s{sT0}, s{sT0}, {MOD2}\nv_writelane_b32 v{t0}, s{sT0}, 7\n'
                  f's_lshl_b32 s{sT0}, s{sXs}, 7\ns_add_u32 s{sT0}, s{sT0}, {KVG}\nv_writelane_b32 v{t0}, s{sT0}, 13\ns_lshl_b32 s{sT0}, s{sR}, 9')
                s.setexec(0x3fff)
                I(f'buffer_load_dword v{vJ}, v{t0}, {srd(S_WS)}, 0 offen')
                s.setexec(0xf)
                I(f'buffer_load_dword v{vJ}, v{vA}, {srd(S_WK)}, s{sT0} offen\nbuffer_load_dword v{vJ}, v{vA}, {srd(S_WV)}, s{sT0} offen')
                s.setexec(-1)

            def w3():
                I(f's_lshl_b32 s{sT0}, s{sG}, 16\ns_lshl_b32 s{sT1}, s{sJ}, 13\ns_add_u32 s{sT0}, s{sT0}, s{sT1}\ns_add_u32 s{sT0}, s{sT0}, {H}\n'
                  f'buffer_load_dword v{vJ}, v{vA}, {srd(S_WS)}, s{sT0} offen')
            g.branches([(f's_cmp_eq_u32 s{sW}, 2', w2), (None, w3)])
            I(f's_lshl_b32 s{sT0}, s{sR}, 14\ns_lshl_b32 s{sT1}, s{sW}, 13\ns_add_u32 s{sT0}, s{sT0}, s{sT1}\ns_sub_u32 s{sT0}, s{sT0}, 16384\n'
              f'buffer_load_dword v{vJ}, v{vA}, {srd(S_WQ)}, s{sT0} offen')
            I(f's_mul_i32 s{sT0}, s{sR}, {16 * 6144}\ns_mul_i32 s{sT1}, s{sW}, {8 * 6144}\ns_add_u32 s{sT0}, s{sT0}, s{sT1}\ns_lshl_b32 s{sT1}, s{sXs}, 9\n'
              f's_add_u32 s{sT0}, s{sT0}, s{sT1}\ns_sub_u32 s{sT0}, s{sT0}, {16 * 6144 - 2048}\n'
              f'v_mul_u32_u24 v{vA}, 6144, v{vR4}\nv_lshl_add_u32 v{vA}, v{vC8}, 4, v{vA}')
            s.setexec(0xffffffff)
            I(f'buffer_load_dword v{vJ}, v{vA}, {srd(S_WMOD)}, s{sT0} offen')
            s.setexec(-1)
        a, b, ea, eb = R.alloc(), R.alloc(), R.alloc(), R.alloc()
        g.branches([(f's_cmp_lt_u32 s{sW}, 2', lo_loads)])
        s.stamp('iss')
        g.wait(v=tC)
        I(f'v_lshlrev_b32 v{a}, 16, v{vC}\nv_and_b32 v{b}, 0xffff0000, v{vC}\nv_mul_f32 v{ea}, {fl(-LOG2E)}, v{a}\nv_mul_f32 v{eb}, {fl(-LOG2E)}, v{b}\n'
          f'v_exp_f32 v{ea}, v{ea}\nv_exp_f32 v{eb}, v{eb}\nv_add_f32 v{ea}, 1.0, v{ea}\nv_add_f32 v{eb}, 1.0, v{eb}\n'
          f'v_rcp_f32 v{ea}, v{ea}\nv_rcp_f32 v{eb}, v{eb}\nv_mul_f32 v{a}, v{a}, v{ea}\nv_mul_f32 v{b}, v{b}, v{eb}\nv_cvt_pk_bf16_f32 v{a}, v{a}, v{b}\n'
          f'v_add_u32 v{b}, {L_SILU}, v{vT4}')
        I('s_waitcnt lgkmcnt(0)')
        I(f'ds_write_b32 v{b}, v{a}')
        I(f's_mul_i32 s{sE}, s{sE}, 0x9e3779b1\ns_add_u32 s{sE}, s{sE}, 0x7f4a7c15\ns_getreg_b32 s{sT0}, hwreg(HW_REG_XCC_ID, 0, 4)\n'
          f's_and_b32 s{sMODE}, s{sE}, 0xfffffff0\ns_or_b32 s{sMODE}, s{sMODE}, s{sT0}')

        def xpub():
            I(f's_lshl_b32 s{sT1}, s{sR}, 7\ns_add_u32 s{sT0}, s{sSET}, s{sT1}\n'
              f'v_mov_b32 v{ea}, s{sMODE}\nv_mov_b32 v{eb}, {XCCW}\ns_mov_b64 exec, 1\nbuffer_store_dword v{ea}, v{eb}, {srd(S_WS)}, s{sT0} offen sc1\ns_mov_b64 exec, -1')
        g.branches([(f's_cmp_eq_u32 s{sW}, 1', xpub)])
        g.wait_all(v=False, l=True)
        I('s_barrier')
        s.stamp('bar1', True)
        g.branches([(f's_cmp_ge_u32 s{sW}, 2', hi_touch)])
        for r_ in (a, b, ea, eb, vC, vT4, vMA, vXS): R.rel(r_)
        SF = R.alloc(8)
        I(f's_lshl_b32 s{sT0}, s{sMA}, 7\ns_add_u32 s{sT0}, s{sT0}, {L_SILU}\nv_lshl_add_u32 v{vA}, v{vGQ}, 3, s{sT0}')
        for k in range(2): I(f'ds_read2_b64 {vr(SF + 4 * k, 4)}, v{vA} offset0:{8 * k} offset1:{8 * k + 4}')
        vIM = R.alloc(4); vIT = R.alloc(4)
        I(f'v_bfe_u32 v{t0}, v{vL}, 3, 2\nv_lshl_add_u32 v{t1}, v{vR4}, 7, v{vC8}')
        for nt in range(4): I(f'v_xor_b32 v{t2}, {nt}, v{t0}\nv_lshl_add_u32 v{vIM + nt}, v{t2}, 5, v{t1}\nv_add_u32 v{vIT + nt}, s{sT3}, v{vIM + nt}')
        for sd in (S_WO, S_WIN, S_WSP, S_BSP, S_WOUT, S_OUT):
            I(f's_mov_b32 s{sd + 2}, {hex(sizes[sd])}\ns_mov_b32 s{sd + 3}, 0x20000')
        I(f's_mov_b32 s{sLIM}, {SPIN}\ns_mov_b32 s{sONES}, 0x3f803f80')
        I(f'v_lshlrev_b32 v{vXA}, 10, v{vL15}\nv_lshl_add_u32 v{vXA}, v{vGQ}, 3, v{vXA}\n'
          f's_lshl_b32 s{sFRG}, s{sG}, 16\ns_lshl_b32 s{sT0}, s{sW}, 14\ns_add_u32 s{sFRG}, s{sFRG}, s{sT0}\ns_add_u32 s{sROW}, s{sFRG}, s{s.sJ128}\n'
          f's_lshl_b32 s{sGRP}, s{sG}, 17\ns_add_u32 s{sGRP}, s{sGRP}, {GRP}')

        def setup2():
            I(f's_and_b32 s{sT0}, s{sW}, 1\ns_mul_i32 s{sT0}, s{sT0}, {HALF}\ns_lshr_b32 s{sT1}, s{sW}, 1\ns_lshl_b32 s{sT1}, s{sT1}, 10\ns_add_u32 s{sKVO}, s{sT0}, s{sT1}\n'
              f'v_add_u32 v{vK}, s{sT0}, v{vL16}\n'
              f'v_and_b32 v{t0}, 31, v{vL}\nv_lshrrev_b32 v{t1}, 5, v{vL}\nv_lshlrev_b32 v{t1}, 8, v{t1}\nv_lshl_add_u32 v{t1}, v{t0}, 4, v{t1}\nv_add_u32 v{t1}, 1024, v{t1}\n'
              f'v_and_b32 v{t2}, 27, v{t0}\nv_cmp_eq_u32 vcc, 16, v{t2}\nv_mov_b32 v{t2}, 2064\nv_mov_b32 v{vV1}, 2048\nv_cndmask_b32 v{t2}, v{t2}, v{vV1}, vcc\n'
              f'v_cmp_gt_u32 vcc, 16, v{t0}\nv_add_u32 v{vV1}, 512, v{t1}\nv_cndmask_b32 v{vV0}, v{t2}, v{t1}, vcc\nv_cndmask_b32 v{vV1}, v{t2}, v{vV1}, vcc\n'
              f'v_add_u32 v{vV0}, s{sT0}, v{vV0}\nv_add_u32 v{vV1}, s{sT0}, v{vV1}')
            for q in range(7):
                I(f'v_add_u32 v{t0}, {64 * q}, v{vL}\nv_mul_u32_u24 v{t1}, 4682, v{t0}\nv_lshrrev_b32 v{t1}, 16, v{t1}\nv_mul_u32_u24 v{t2}, 14, v{t1}\nv_sub_u32 v{t0}, v{t0}, v{t2}\n'
                  f'v_mul_u32_u24 v{t1}, 3584, v{t1}\nv_lshl_add_u32 v{s.vWIN + q}, v{t0}, 4, v{t1}')
            I(f's_mul_i32 s{s.sWIN}, s{sW}, {32 * 3584}\ns_mul_i32 s{sT0}, s{sJ}, 224\ns_add_u32 s{s.sWIN}, s{s.sWIN}, s{sT0}\ns_mul_i32 s{s.sW7}, s{sW}, 7168')
            I(f'v_lshlrev_b32 v{t0}, 12, v{vL15}\nv_lshl_add_u32 v{t0}, v{vGQ}, 4, v{t0}\ns_lshl_b32 s{sT1}, s{sG}, 18\ns_lshl_b32 s{sT2}, s{sW}, 7\ns_add_u32 s{sT1}, s{sT1}, s{sT2}')
            for u in range(4):
                I(f's_add_u32 s{sT0}, s{sW}, {u}\ns_and_b32 s{sT0}, s{sT0}, 3\ns_lshl_b32 s{sT0}, s{sT0}, 16\ns_add_u32 s{sT0}, s{sT0}, s{sT1}\nv_add_u32 v{vSP + u}, s{sT0}, v{t0}')
            I(f's_and_b32 s{sT0}, s{sG}, 3\ns_lshl_b32 s{sT0}, s{sT0}, 1\ns_xor_b32 s{sT0}, s{sT0}, s{sXs}\ns_xor_b32 s{sT0}, s{sT0}, s{sJ}')
            for xi in range(8): I(f's_xor_b32 s{sSX + xi}, s{sT0}, {xi}\ns_lshl_b32 s{sSX + xi}, s{sSX + xi}, 9')
        if 'late2' not in s.opt: setup2()
        AC = R.alloc(16)
        I(f's_mov_b32 s{sM0}, 0xffff0000\ns_mov_b32 s{sM0 + 1}, 0xffff0000\ns_mov_b32 s{sM1}, 0\ns_mov_b32 s{sM1 + 1}, -1\n'
          f's_lshl_b32 s{sT0}, s{sW}, 2\ns_add_u32 s{sT0}, s{sT0}, {L_PART}\nv_add_u32 v{vA}, s{sT0}, v{vL16}')
        s.stamp('setup', True)
        g.wait(v=tMOD)
        s.stamp('modimg')
        jobs = [dict(addr=vIT + nt, o1=k * 4096, o2=k * 4096 + 2048, act=vr(SF + 4 * k, 4), acc=AC + 4 * nt, first=(k == 0), wfirst=False)
                for k in range(2) for nt in range(4)]
        s.gemm(jobs, look=7, wn=2)
        I(f'v_cndmask_b32 v{AC}, v{AC}, v{AC + 4}, s[{sM0}:{sM0 + 1}]\nv_cndmask_b32 v{AC + 8}, v{AC + 8}, v{AC + 12}, s[{sM0}:{sM0 + 1}]\n'
          f'v_cndmask_b32 v{AC}, v{AC}, v{AC + 8}, s[{sM1}:{sM1 + 1}]\nds_write_b32 v{vA}, v{AC}')
        g.wait_all(v=False, l=True)
        I('s_barrier')
        R.rel(vIT, 4); R.rel(SF, 8); R.rel(AC + 8, 8)

        def publish_sum(part, nl, pre, stores, rnd):
            q = AC
            I(f'v_add_u32 v{vA}, {part}, v{vL16}')
            if nl < 64: s.setexec((1 << nl) - 1)
            I(f'ds_read_b128 {vr(q, 4)}, v{vA}')
            I(pre + f'\nv_lshlrev_b32 v{vA}, 3, v{vL}')
            g.wait_all(v=False, l=True)
            I(f'v_add_f32 v{q}, v{q}, v{q + 1}\nv_add_f32 v{q + 2}, v{q + 2}, v{q + 3}\nv_mov_b32 v{q + 1}, s{sE}\nv_add_f32 v{q}, v{q}, v{q + 2}')
            if rnd:
                I(f'v_cvt_pk_bf16_f32 v{q}, v{q}, v{q}\nv_and_b32 v{q}, 0xffff0000, v{q}\nv_add_f32 v{q}, s{sT2}, v{q}\n'
                  f'v_cvt_pk_bf16_f32 v{q}, v{q}, v{q}\nv_and_b32 v{q}, 0xffff0000, v{q}')
            stores(q)
            if nl < 64: s.setexec(-1)

        def modpub():
            publish_sum(L_PART, 64,
                        f's_and_b32 s{sT0}, s{sR}, 1\ns_lshl_b32 s{sT0}, s{sT0}, 13\ns_lshr_b32 s{sT1}, s{sR}, 1\ns_lshl_b32 s{sT1}, s{sT1}, 9\ns_add_u32 s{sT0}, s{sT0}, s{sT1}\n'
                        f's_lshl_b32 s{sT1}, s{sXs}, 14\ns_add_u32 s{sT1}, s{sT1}, s{sT0}\ns_add_u32 s{sT1}, s{sT1}, {MODB}\ns_add_u32 s{sT0}, s{sT0}, s{sSET}\ns_add_u32 s{sT0}, s{sT0}, {MODA}',
                        lambda q: I(f'buffer_store_dwordx2 {vr(q, 2)}, v{vA}, {srd(S_WS)}, s{sT0} offen\nbuffer_store_dwordx2 {vr(q, 2)}, v{vA}, {srd(S_WS)}, s{sT1} offen sc1'), False)

        def wkv_dma(sd, lds):
            def f():
                for i in range(16):
                    if i % 4 == 0: I(f's_mov_b32 m0, {lds + i * 1024}\ns_mov_b32 s{sT0}, {i * 1024}')
                    s.dma(vL16, sd, f's{sT0}', None, off=(i % 4) * 1024)
            return f
        g.branches([(f's_cmp_eq_u32 s{sW}, 0', wkv_dma(S_WK, L_WK)), (f's_cmp_eq_u32 s{sW}, 1', wkv_dma(S_WV, L_WV)), (f's_cmp_eq_u32 s{sW}, 3', modpub)])
        s.stamp('modpub')
        g.wait(v=tX)
        sm, sq = R.alloc(), R.alloc()
        I(f'v_mov_b32 v{sm}, 0\nv_mov_b32 v{sq}, 0')
        for i in range(8): I(f'v_dot2c_f32_bf16 v{sm}, s{sONES}, v{XS + i}\nv_dot2c_f32_bf16 v{sq}, v{XS + i}, v{XS + i}')
        s.rowred([sm, sq], 'v_add_f32')
        s.xsum(sm, do32=False); s.xsum(sq, do32=False)
        s.meanstd(sm, sq, 512)
        pr = R.alloc(2)
        I(f'v_mov_b32 v{pr}, v{sq}\nv_mov_b32 v{pr + 1}, v{sm}\ns_lshl_b32 s{sT0}, s{sW}, 4\ns_add_u32 s{sT0}, s{sT0}, {L_STAT}\n'
          f'v_lshrrev_b32 v{vA}, 5, v{vL}\nv_lshl_add_u32 v{vA}, v{vA}, 3, s{sT0}')
        s.setexec(0x100000001)
        I(f'ds_write_b64 v{vA}, {vr(pr, 2)}')
        s.setexec(-1)
        g.wait_all(v=False, l=True)
        I('s_barrier')
        R.rel(pr, 2); R.rel(sm); R.rel(sq); R.rel(XS, 8)
        s.stamp('stats')
        WF = R.alloc(64); HFm = R.alloc(64); MG = R.alloc(32)

        def xcheck():
            xw = R.alloc()
            I(f's_add_u32 s{sA}, s{sSET}, {XCCW}\nv_lshlrev_b32 v{vA}, 7, v{vL}')
            s.setexec(0xffffffff)
            s.poll(lambda: I(f'buffer_load_dword v{xw}, v{vA}, {srd(S_WS)}, s{sA} offen sc1'),
                   lambda: I(f'v_xor_b32 v{t0}, s{sE}, v{xw}\nv_lshrrev_b32 v{t0}, 4, v{t0}\nv_cmp_ne_u32 vcc, 0, v{t0}'))
            I(f'v_cmp_ne_u32 vcc, s{sMODE}, v{xw}\ns_cmp_eq_u64 vcc, 0\ns_cselect_b32 s{sMODE}, 1, 0')
            if s.force_mode is not None: I(f's_mov_b32 s{sMODE}, {s.force_mode}')
            s.setexec(-1)
            R.rel(xw)

        def lo_h():
            ST = HFm; XN = HFm + 16
            I(f'v_mov_b32 v{vB}, {L_STAT}')
            for i in range(4): I(f'ds_read_b128 {vr(ST + 4 * i, 4)}, v{vB} offset:{16 * i}')
            xcheck()
            for i in range(16): I(f'v_lshlrev_b32 v{XN + 2 * i}, 16, v{XC + i}\nv_and_b32 v{XN + 2 * i + 1}, 0xffff0000, v{XC + i}')
            g.wait_all(v=False, l=True)
            I(f's_lshl_b32 s{sT0}, s{sW}, 14\ns_add_u32 s{sT0}, s{sT0}, {L_WK}\nv_lshl_add_u32 v{vB}, v{vR4}, 5, v{vC8}\nv_add_u32 v{vB}, s{sT0}, v{vB}')
            for k in range(16):
                I(f'ds_read_b64_tr_b16 {vr(WF + 4 * k, 2)}, v{vB} offset:{1024 * k}\nds_read_b64_tr_b16 {vr(WF + 4 * k + 2, 2)}, v{vB} offset:{1024 * k + 512}')
                i, e = divmod(k, 2)
                I(f'v_pk_fma_f32 {vr(XN + 4 * i + 2 * e, 2)}, {vr(XN + 4 * i + 2 * e, 2)}, {vr(ST + 2 * i, 2)}, {vr(ST + 2 * i, 2)} op_sel:[0,0,1] op_sel_hi:[1,0,1]')
                if k % 4 == 3: g.wait(l=g.ltok() - 6)
            I(f'v_lshlrev_b32 v{vA}, 5, v0\nv_add_u32 v{t2}, 8192, v{vA}\ns_add_u32 s{sA}, s{sSET}, {MODA}\ns_add_u32 s{sB}, s{sA}, 4096\ns_mov_b32 s{sT3}, 0\n'
              f's_lshl_b32 s{sT2}, s{sXs}, 14\ns_add_u32 s{sT2}, s{sT2}, {MODB}\ns_add_u32 s{sT1}, s{sSET}, {MODA}')

            def mloads():
                for q in range(8):
                    I(f'buffer_load_dwordx4 {vr(MG + 4 * q, 4)}, v{vA if q < 4 else t2}, {srd(S_WS)}, s{sA if q & 2 == 0 else sB} offen offset:{16 * (q & 1)} sc1')
                I(f's_add_u32 s{sT3}, s{sT3}, 1\ns_and_b32 s{sT0}, s{sT3}, 3\ns_cmp_eq_u32 s{sT0}, 3\ns_cselect_b32 s{sA}, s{sT2}, s{sT1}\ns_add_u32 s{sB}, s{sA}, 4096')

            def mcheck():
                I(f'v_min3_u32 v{t0}, v{MG + 1}, v{MG + 3}, v{MG + 5}\nv_max3_u32 v{t1}, v{MG + 1}, v{MG + 3}, v{MG + 5}')
                for q in range(7, 31, 4): I(f'v_min3_u32 v{t0}, v{t0}, v{MG + q}, v{MG + q + 2}\nv_max3_u32 v{t1}, v{t1}, v{MG + q}, v{MG + q + 2}')
                I(f'v_min_u32 v{t0}, v{t0}, v{MG + 31}\nv_max_u32 v{t1}, v{t1}, v{MG + 31}\n'
                  f'v_xor_b32 v{t0}, s{sE}, v{t0}\nv_xor_b32 v{t1}, s{sE}, v{t1}\nv_or_b32 v{t0}, v{t0}, v{t1}\nv_cmp_ne_u32 vcc, 0, v{t0}')
            s.poll(mloads, mcheck)
            I(f'v_lshlrev_b32 v{vA}, 3, v0\nv_add_u32 v{vA}, {L_HROW}, v{vA}')
            for q in range(4):
                I(f'v_add_f32 v{MG + 4 * q}, v{MG + 4 * q}, v{MG + 16 + 4 * q}\nv_add_f32 v{MG + 4 * q + 1}, v{MG + 4 * q + 2}, v{MG + 18 + 4 * q}')
            I(f'v_pk_add_f32 {vr(MG + 8, 2)}, {vr(MG + 8, 2)}, 1.0 op_sel_hi:[1,0]\nv_pk_add_f32 {vr(MG + 12, 2)}, {vr(MG + 12, 2)}, 1.0 op_sel_hi:[1,0]')
            for i in range(8):
                x_ = XN + 4 * i
                I(f'v_pk_fma_f32 {vr(x_, 2)}, {vr(x_, 2)}, {vr(MG + 8, 2)}, {vr(MG, 2)}\nv_pk_fma_f32 {vr(x_ + 2, 2)}, {vr(x_ + 2, 2)}, {vr(MG + 12, 2)}, {vr(MG + 4, 2)}\n'
                  f'v_cvt_pk_bf16_f32 v{x_}, v{x_}, v{x_ + 1}\nv_cvt_pk_bf16_f32 v{x_ + 1}, v{x_ + 2}, v{x_ + 3}\nds_write_b64 v{vA}, {vr(x_, 2)} offset:{1040 * i}')
            g.wait_all(v=False, l=True)

        def hi_dma():
            xcheck()
            I(f's_lshl_b32 s{sIL}, s{sW}, 15\ns_sub_u32 s{sIL}, s{sIL}, 65536\ns_lshl_b32 s{sIS}, s{sIL}, 3\ns_add_u32 s{sIS}, s{sIS}, s{s.sJ128}')
            for c in range(32):
                for f in s.img_pair(S_WQ, L_WQ, c, sIS, sIL): f()
            I(f'v_mul_u32_u24 v{vB}, 6144, v{vL}\ns_mul_i32 s{sT1}, s{sW}, {256 * 6144}\ns_lshl_b32 s{sT0}, s{sXs}, 9\ns_add_u32 s{sT1}, s{sT1}, s{sT0}\n'
              f's_lshl_b32 s{sT0}, s{sR}, 4\ns_add_u32 s{sT1}, s{sT1}, s{sT0}\ns_sub_u32 s{sT1}, s{sT1}, {512 * 6144 - 2048}\ns_lshl_b32 s{sT2}, s{sW}, 12')
            for i in range(4):
                I(f's_add_u32 m0, s{sT2}, {L_MOD2 - 8192 + 1024 * i}\ns_add_u32 s{sT0}, s{sT1}, {64 * 6144 * i}')
                s.dma(vB, S_WMOD, f's{sT0}', None)
        g.branches([(f's_cmp_lt_u32 s{sW}, 2', lo_h), (None, hi_dma)])
        s.stamp('hrdy')
        I('s_barrier')
        R.rel(XC, 16); R.rel(MG, 32)
        kn = R.alloc(); fg = R.alloc(2)

        def kvgemm(wfirst, fill):
            I(f'v_and_b32 v{vA}, 7, v{vL}\nv_mul_u32_u24 v{vA}, 1040, v{vA}\nv_lshl_add_u32 v{vA}, v{vGQ}, 3, v{vA}\nv_add_u32 v{vA}, {L_HROW}, v{vA}')
            tk = []
            for k in range(8):
                I(f'ds_read2_b64 {vr(HFm + 4 * k, 4)}, v{vA} offset0:{8 * k} offset1:{8 * k + 4}'); tk.append(g.ltok())
            fill()
            for k in range(16):
                if k % 2 == 0: g.wait(l=tk[k + 1])
                w_, h_ = vr(WF + 4 * k, 4), vr(HFm + 4 * k, 4)
                s.mf16(vr(AC, 4), w_ if wfirst else h_, h_ if wfirst else w_, '0' if k == 0 else None)
                if k + 8 < 16:
                    I(f'ds_read2_b64 {vr(HFm + 4 * (k + 8), 4)}, v{vA} offset0:{8 * (k + 8)} offset1:{8 * (k + 8) + 4}'); tk.append(g.ltok())

        def kwave():
            kvgemm(True, lambda: I(
                f'v_lshrrev_b32 v{vB}, 2, v{vL15}\nv_lshlrev_b32 v{vB}, 3, v{vB}\nv_and_b32 v{t0}, 3, v{vL15}\nv_add_u32 v{vB}, v{vB}, v{t0}\n'
                f'v_and_b32 v{t0}, 1, v{vGQ}\nv_lshl_add_u32 v{vB}, v{t0}, 5, v{vB}\nv_lshlrev_b32 v{vB}, 4, v{vB}\n'
                f'v_lshrrev_b32 v{t0}, 1, v{vGQ}\nv_lshl_add_u32 v{vB}, v{t0}, 3, v{vB}\n'
                f's_and_b32 s{sT0}, s{sJ}, 2\ns_lshl_b32 s{sT0}, s{sT0}, 7\ns_and_b32 s{sT1}, s{sJ}, 1\ns_lshl_b32 s{sT1}, s{sT1}, 6\n'
                f's_add_u32 s{sT0}, s{sT0}, s{sT1}\ns_add_u32 s{sT0}, s{sT0}, s{sREC}\nv_mov_b32 v{kn}, 0'))
            I(f'v_cvt_pk_bf16_f32 v{AC}, v{AC}, v{AC + 1}\nv_cvt_pk_bf16_f32 v{AC + 1}, v{AC + 2}, v{AC + 3}')
            s.setexec(0x00ff00ff00ff00ff)
            I(f'buffer_store_dwordx2 {vr(AC, 2)}, v{vB}, {srd(S_WS)}, s{sT0} offen sc1')
            s.setexec(-1)

        def vwave():
            def fill():
                I(f'v_lshlrev_b32 v{vB}, 4, v{vL15}\nv_lshl_add_u32 v{vB}, v{vGQ}, 3, v{vB}\n'
                  f's_and_b32 s{sT1}, s{sJ}, 3\ns_lshl_b32 s{sT0}, s{sT1}, 8\ns_add_u32 s{sT0}, s{sT0}, s{sREC}\nv_mov_b32 v{kn}, 0')

                def consts():
                    q = AC + 4
                    I(f'v_cmp_eq_u32 vcc, 0, v{vL}\nv_mov_b32 v{t0}, s{sONES}\nv_cndmask_b32 v{q}, 0, v{t0}, vcc\nv_mov_b32 v{q + 1}, v{q}\nv_mov_b32 v{q + 2}, v{q}\nv_mov_b32 v{q + 3}, v{q}')
                    s.setexec(3)
                    I(f'buffer_store_dwordx4 {vr(q, 4)}, v{vL16}, {srd(S_WS)}, s{sREC} offen offset:2048 sc1')
                    s.setexec(-1)
                g.branches([(f's_cmp_eq_u32 s{sT1}, 0', consts)])
            kvgemm(False, fill)
            I(f'v_cvt_pk_bf16_f32 v{AC}, v{AC}, v{AC + 1}\nv_cvt_pk_bf16_f32 v{AC + 1}, v{AC + 2}, v{AC + 3}')
            s.setexec(0xffffffff)
            I(f'buffer_store_dwordx2 {vr(AC, 2)}, v{vB}, {srd(S_WS)}, s{sT0} offen offset:1024 sc1')
            s.setexec(-1)

        def hwave():
            I(f'v_and_b32 v{t0}, 7, v{vL}\nv_mul_u32_u24 v{vA}, 1040, v{t0}\nv_bfe_u32 v{t1}, v{vL}, 3, 2\nv_lshl_add_u32 v{vA}, v{t1}, 3, v{vA}\n'
              f'v_lshrrev_b32 v{t2}, 5, v{vL}\nv_lshl_add_u32 v{vA}, v{t2}, 6, v{vA}\n'
              f's_lshl_b32 s{sT0}, s{sW}, 9\ns_add_u32 s{sT0}, s{sT0}, {L_HROW - 1024}\nv_add_u32 v{vA}, s{sT0}, v{vA}')
            for i in range(4): I(f'ds_read2_b64 {vr(HFm + 4 * i, 4)}, v{vA} offset0:{16 * i} offset1:{16 * i + 4}')
            I(f'v_lshl_add_u32 v{vB}, v{t1}, 4, v{t0}\nv_lshlrev_b32 v{vB}, 4, v{vB}\nv_lshl_add_u32 v{vB}, v{t2}, 10, v{vB}\n'
              f's_lshl_b32 s{sT0}, s{sG}, 16\ns_lshr_b32 s{sT1}, s{sJ}, 1\ns_lshl_b32 s{sT1}, s{sT1}, 14\ns_add_u32 s{sT0}, s{sT0}, s{sT1}\n'
              f's_and_b32 s{sT1}, s{sJ}, 1\ns_lshl_b32 s{sT1}, s{sT1}, 7\ns_add_u32 s{sT0}, s{sT0}, s{sT1}\n'
              f's_lshl_b32 s{sT1}, s{sW}, 13\ns_add_u32 s{sT0}, s{sT0}, s{sT1}\ns_add_u32 s{sT0}, s{sT0}, {H - 16384}\ns_add_u32 s{sT1}, s{sT0}, 4096')
            g.wait_all(v=False, l=True)

            def st(f):
                for i in range(4):
                    I(f'buffer_store_dwordx4 {vr(HFm + 4 * i, 4)}, v{vB}, {srd(S_WS)}, s{sT0 if i < 2 else sT1} offen offset:{2048 * (i & 1)} {f}')
            s.local_store(st)
            g.wait_all(v=True, l=False)
        g.branches([(f's_cmp_eq_u32 s{sW}, 0', kwave), (f's_cmp_eq_u32 s{sW}, 1', vwave), (None, hwave)])
        R.rel(WF, 64)
        s.stamp('kvst')

        def kvflag():
            def knorm():
                I(f'v_dot2c_f32_bf16 v{kn}, v{AC}, v{AC}\nv_dot2c_f32_bf16 v{kn}, v{AC + 1}, v{AC + 1}')
                s.xsum(kn)
                s.rowred([kn], 'v_max_f32', steps=3)
            g.branches([(f's_cmp_eq_u32 s{sW}, 0', knorm)])
            I(f'v_mov_b32 v{fg}, s{sE}\nv_mov_b32 v{fg + 1}, v{kn}\nv_mov_b32 v{vB}, 0\n'
              f's_add_u32 s{sA}, s{sSET}, {KVL}\ns_lshl_b32 s{sT0}, s{sR}, 4\ns_lshl_b32 s{sT1}, s{sW}, 3\ns_add_u32 s{sT0}, s{sT0}, s{sT1}\ns_add_u32 s{sB}, s{sT0}, s{sA}')
            g.wait_all(v=True, l=False, force=True)
            s.setexec(1)
            s.local_store(lambda f: I(f'buffer_store_dwordx2 {vr(fg, 2)}, v{vB}, {srd(S_WS)}, s{sB} offen {f}'))
            s.setexec(-1)

            def leader():
                I(f'v_lshlrev_b32 v{vA}, 3, v{vL}\ns_lshl_b32 s{sT1}, s{sXs}, 7\ns_add_u32 s{sT1}, s{sT1}, {KVG}')
                s.poll(lambda: I(f'buffer_load_dwordx2 {vr(fg, 2)}, v{vA}, {srd(S_WS)}, s{sA} offen sc1'), lambda: I(f'v_cmp_ne_u32 vcc, s{sE}, v{fg}'))
                s.rowred([fg + 1], 'v_max_f32')
                s.xsum(fg + 1, 'v_max_f32')
                I(f'v_mov_b32 v{fg}, s{sE}')
                s.setexec(1)
                I(f'buffer_store_dwordx2 {vr(fg, 2)}, v{vB}, {srd(S_WS)}, s{sT1} offen sc1')
                s.setexec(-1)
            g.branches([(f's_or_b32 s{sT0}, s{sR}, s{sW}\ns_cmp_eq_u32 s{sT0}, 0', leader)])

        def hflag():
            I(f's_lshl_b32 s{sT0}, s{sW}, 5\ns_lshl_b32 s{sT1}, s{sJ}, 2\ns_add_u32 s{sT0}, s{sT0}, s{sT1}\ns_add_u32 s{sA}, s{sT0}, s{sGF}\ns_sub_u32 s{sA}, s{sA}, {64 - HF}\n'
              f'v_mov_b32 v{fg}, s{sE}\nv_mov_b32 v{vB}, 0')
            s.setexec(1)
            s.local_store(lambda f: I(f'buffer_store_dword v{fg}, v{vB}, {srd(S_WS)}, s{sA} offen {f}'))
            s.setexec(-1)
        g.branches([(f's_cmp_lt_u32 s{sW}, 2', kvflag), (None, hflag)])
        R.rel(kn)
        I(f's_add_u32 s{sA}, s{sGF}, {HF}\nv_lshlrev_b32 v{vA}, 2, v{vL}')
        s.flag_poll(vA, 16, f's{sA}')
        s.stamp('hflag')
        side = {}
        tk = s.act_loads([HFm + 4 * k for k in range(16)], sFRG, H, 16, 4, 5, side)
        I(f's_and_b32 s{sT0}, s{sW}, 1\ns_lshl_b32 s{sT0}, s{sT0}, 8\ns_lshr_b32 s{sT1}, s{sW}, 1\ns_lshl_b32 s{sT1}, s{sT1}, 12\ns_add_u32 s{sT0}, s{sT0}, s{sT1}\ns_add_u32 s{sT0}, s{sT0}, {L_QX}\n'
          f'v_and_b32 v{t0}, 1, v{vGQ}\nv_lshl_add_u32 v{vA}, v{t0}, 5, v{vL15}\nv_lshlrev_b32 v{vA}, 4, v{vA}\nv_lshrrev_b32 v{t0}, 1, v{vGQ}\n'
          f'v_lshl_add_u32 v{vA}, v{t0}, 3, v{vA}\nv_add_u32 v{vA}, s{sT0}, v{vA}\ns_mov_b32 s{sM0}, {fl(0.25 * LOG2E)}\ns_mov_b32 s{sM0 + 1}, {fl(0.25 * LOG2E)}')
        jobs = [dict(addr=vIM + nt, o1=L_WQ + 4096 * k, o2=L_WQ + 4096 * k + 2048, act=vr(HFm + 4 * k, 4), vtok=tk[k], acc=QA + 4 * nt, first=(k == 0), wfirst=True)
                for k in range(16) for nt in range(4)]
        I('s_barrier')
        s.gemm(jobs, side=side)
        R.rel(HFm, 64)
        for h in range(4):
            b_ = QA + 4 * h
            I(f'v_pk_mul_f32 {vr(b_, 2)}, {vr(b_, 2)}, s[{sM0}:{sM0 + 1}]\nv_pk_mul_f32 {vr(b_ + 2, 2)}, {vr(b_ + 2, 2)}, s[{sM0}:{sM0 + 1}]\n'
              f'v_cvt_pk_bf16_f32 v{b_}, v{b_}, v{b_ + 1}\nv_cvt_pk_bf16_f32 v{b_ + 1}, v{b_ + 2}, v{b_ + 3}\nds_write_b64 v{vA}, {vr(b_, 2)} offset:{1024 * h}')
        R.rel(vIM, 4)
        g.wait_all(v=False, l=True)
        I('s_barrier')
        Q = QA
        I(f's_and_b32 s{sT0}, s{sW}, 1\ns_lshl_b32 s{sT0}, s{sT0}, 11\ns_lshr_b32 s{sT1}, s{sW}, 1\ns_lshl_b32 s{sT1}, s{sT1}, 12\ns_add_u32 s{sT1}, s{sT1}, {L_QX}\n'
          f's_add_u32 s{sT2}, s{sT1}, s{sT0}\ns_xor_b32 s{sT0}, s{sT0}, 2048\ns_add_u32 s{sT1}, s{sT1}, s{sT0}\n'
          f'v_add_u32 v{vA}, s{sT2}, v{vL16}\nv_add_u32 v{vB}, s{sT1}, v{vL16}')
        for q in range(4): I(f'ds_read_b128 {vr(Q + 4 * q, 4)}, v{vA if q < 2 else vB} offset:{1024 * (q & 1)}')
        R.rel(fg, 2); R.rel(AC, 8); R.rel(vR4); R.rel(vC8)
        Oa = R.alloc(64); CN = R.alloc(64); Sb = R.alloc(32); Pb = R.alloc(16); KF = R.alloc(8); VF = R.alloc(16)
        QN = Sb + 16; fg = Sb + 20
        for q in range(4): I(f'v_mov_b32 v{QN + q}, 0')
        g.wait_all(v=False, l=True)
        for i in range(4):
            for q in range(4): I(f'v_dot2c_f32_bf16 v{QN + q}, v{Q + 4 * q + i}, v{Q + 4 * q + i}')
        for q in range(4): s.xsum(QN + q, do16=False)
        s.stamp('qdone')
        I(f'v_lshlrev_b32 v{vA}, 7, v{vL}\ns_mov_b32 s{sA}, {KVG}')
        s.poll(lambda: I(f'buffer_load_dwordx2 {vr(fg, 2)}, v{vA}, {srd(S_WS)}, s{sA} offen sc1'), lambda: I(f'v_cmp_ne_u32 vcc, s{sE}, v{fg}'), mask=0xff)
        s.stamp('kvflag')

        def kvpre(i):
            if i == 32: I(f's_and_b32 s{sB}, s{sW}, 1\ns_mul_i32 s{sB}, s{sB}, {HALF}\ns_add_u32 m0, s{sB}, 65536\ns_add_u32 s{sB}, s{sB}, {KV + 65536}')
            else: I(f's_add_u32 m0, s{sKVO}, {2048 * i}\ns_add_u32 s{sB}, s{sKVO}, {KV + 2048 * i}')

        def kvop(i): s.dma(vL16, S_WS, f's{sB}', None, off=2048 * (i & 1), fl_='sc1')
        NA, NB = 4, 10
        for i in range(NB):
            if i % 2 == 0: kvpre(i)
            kvop(i)
            if i == NA - 1: tA = g.vtok()
        tB = g.vtok()
        SF = Oa; AC = Oa + 16
        I(f's_lshl_b32 s{sT0}, s{sW}, 8\ns_add_u32 s{sT0}, s{sT0}, {L_SILU}\nv_lshl_add_u32 v{vA}, v{vGQ}, 3, s{sT0}')
        for k in range(4): I(f'ds_read2_b64 {vr(SF + 4 * k, 4)}, v{vA} offset0:{8 * k} offset1:{8 * k + 4}')
        I(f's_lshl_b32 s{sT0}, s{sW}, 11\ns_add_u32 s{sT0}, s{sT0}, {L_MOD2}\nv_and_b32 v{vB}, 1, v{vL}\nv_lshlrev_b32 v{vB}, 3, v{vB}\nv_lshrrev_b32 v{t0}, 2, v{vL}\n'
          f'v_lshl_add_u32 v{vB}, v{t0}, 4, v{vB}\nv_add_u32 v{vB}, s{sT0}, v{vB}')
        for k in range(4): I(f'ds_read_b64_tr_b16 {vr(Oa + 32 + 4 * k, 2)}, v{vB} offset:{512 * k}\nds_read_b64_tr_b16 {vr(Oa + 34 + 4 * k, 2)}, v{vB} offset:{512 * k + 256}')
        I(f's_lshl_b32 s{sT0}, s{sW}, 2\ns_add_u32 s{sT0}, s{sT0}, {L_PART2}\nv_add_u32 v{vB}, s{sT0}, v{vL16}')
        g.wait_all(v=False, l=True)
        for k in range(4): s.mf16(vr(AC, 4), vr(SF + 4 * k, 4), vr(Oa + 32 + 4 * k, 4), '0' if k == 0 else None)
        s.rowred([fg + 1], 'v_max_f32', steps=3)
        I(f'v_readfirstlane_b32 s{sKM}, v{fg + 1}')

        def epoch():
            I(f'v_mov_b32 v{fg}, s{sE}\nv_mov_b32 v{vA}, 0\ns_mov_b64 exec, 1\nbuffer_store_dword v{fg}, v{vA}, {srd(S_WS)}, 0 offen sc1\ns_mov_b64 exec, -1')
        g.branches([(f's_or_b32 s{sT0}, s2, s{sW}\ns_cmp_eq_u32 s{sT0}, 0', epoch)])
        s.setexec(0xff)
        I(f'ds_write_b32 v{vB}, v{AC}')
        s.setexec(-1)
        g.wait_all(v=False, l=True)
        I('s_barrier')

        def mod2pub():
            nonlocal AC
            publish_sum(L_PART2, 8, f's_lshl_b32 s{sT0}, s{sXs}, 11\ns_lshl_b32 s{sT1}, s{sR}, 6\ns_add_u32 s{sT0}, s{sT0}, s{sT1}\ns_add_u32 s{sT0}, s{sT0}, {MOD2}\n'
                        f's_lshr_b32 s{sT1}, s{sXs}, 1\ns_cmp_eq_u32 s{sT1}, 2\ns_cselect_b32 s{sT2}, 1.0, 0',
                        lambda q: I(f'buffer_store_dwordx2 {vr(q, 2)}, v{vA}, {srd(S_WS)}, s{sT0} offen sc1'), True)
        g.branches([(f's_cmp_eq_u32 s{sW}, 3', mod2pub)])
        for q in range(4):
            I(f'v_mul_f32 v{QN + q}, s{sKM}, v{QN + q}\nv_sqrt_f32 v{QN + q}, v{QN + q}\nv_mul_f32 v{QN + q}, {fl(1.001)}, v{QN + q}')
        I(f'v_max3_f32 v{t0}, v{QN}, v{QN + 1}, v{QN + 2}\nv_max_f32 v{t0}, v{t0}, v{QN + 3}\nv_add_f32 v{t1}, v{QN}, v{QN + 1}\nv_add_f32 v{t2}, v{QN + 2}, v{QN + 3}\nv_add_f32 v{t1}, v{t1}, v{t2}\n'
          f'v_cmp_nge_f32 vcc, {fl(BOUND_T if not s.force_slow else -1.0)}, v{t0}\nv_cmp_u_f32 s[{sM0}:{sM0 + 1}], v{t1}, v{t1}\ns_or_b64 vcc, vcc, s[{sM0}:{sM0 + 1}]')

        def slow():
            L = g.label('mx')
            for q in range(4): I(f'v_mov_b32 v{QN + q}, 0xff7fffff')
            I(f's_mov_b32 s{sA}, {KV}\n{L}:\nbuffer_load_dwordx4 {vr(KF, 4)}, v{vL16}, {srd(S_WS)}, s{sA} offen sc1')
            g.wait_all(v=True, l=False, force=True)
            for q in range(4): s.mf32(vr(Oa + 16 * q, 16), vr(KF, 4), vr(Q + 4 * q, 4), '0')
            for q in range(4):
                for i in range(0, 16, 2): I(f'v_max3_f32 v{QN + q}, v{QN + q}, v{Oa + 16 * q + i}, v{Oa + 16 * q + i + 1}')
            I(f's_add_u32 s{sA}, s{sA}, {REC}\ns_cmp_lt_u32 s{sA}, {KV + 64 * REC}\ns_cbranch_scc1 {L}')
            for q in range(4): s.xsum(QN + q, 'v_max_f32', do16=False)
        g.branches([('s_cmp_lg_u64 vcc, 0', slow)])
        for q in range(4):
            I(f'v_sub_f32 v{CN + 16 * q}, 0, v{QN + q}\nv_sub_f32 v{CN + 16 * q + 1}, 0, v{QN + q}')
            for i in range(2, 16, 2): I(f'v_mov_b64 {vr(CN + 16 * q + i, 2)}, {vr(CN + 16 * q, 2)}')
        I(f's_lshl_b32 s{sIL}, s{sW}, 13\ns_lshl_b32 s{sIS}, s{sIL}, 3\ns_add_u32 s{sIS}, s{sIS}, s{s.sJ128}')
        I(f's_lshl_b32 s{sT0}, s{sW}, 12\ns_lshl_b32 s{sT1}, s{sJ}, 9\ns_add_u32 s{sT0}, s{sT0}, s{sT1}\ns_add_u32 s{sA}, s{sT0}, {MOD2}\nv_lshlrev_b32 v{vA}, 3, v{vL}\n'
          f's_lshl_b32 s{sT0}, s{sG}, 7\ns_lshl_b32 s{sT1}, s{sW}, 5\ns_add_u32 s{sT3}, s{sT0}, s{sT1}\nv_lshlrev_b32 v{vBS}, 1, v{vL15}\nv_and_b32 v{vB}, 31, v{vL}\nv_lshlrev_b32 v{vB}, 7, v{vB}')
        I(f's_lshl_b32 s{sMA}, s{sR}, 2\ns_add_u32 s{sMA}, s{sMA}, s{sW}\ns_lshl_b32 s{sMA}, s{sMA}, 12')
        g.wait(v=tA)
        I('s_barrier')
        s.stamp('kvA')
        I(f'ds_read_b128 {vr(KF, 4)}, v{vK}\nds_read_b128 {vr(VF, 4)}, v{vV0}\nds_read_b128 {vr(VF + 4, 4)}, v{vV1}')
        g.wait_all(v=False, l=True)
        s.mf32(vr(Sb, 16), vr(KF, 4), vr(Q, 4), vr(CN, 16))
        bg = {}; tok = {'B': tB}
        busy = {(0, 1), (1, 1), (2, 2)}
        slots = [(t, q, m) for t in range(32) for q in range(4) for m in range(3) if (q, m) not in busy and not (t == 0 and q == 0 and m == 1) and not (t == 31 and q == 3)]
        used = set()

        def put(at, *fns):
            i = 0
            while slots[i][0] * 4 + slots[i][1] < at or any(i + n in used for n in range(len(fns))): i += 1
            for n, fn in enumerate(fns):
                used.add(i + n); bg.setdefault(slots[i + n], []).append(fn)
            last = slots[i + len(fns) - 1]
            return last[0] * 4 + last[1]

        def both(*fns):
            def f():
                for x in fns: x()
            return f
        at = 0
        for i in range(NB, 33, 2):
            ops = [lambda i=i: kvpre(i), lambda i=i: kvop(i)]
            if i < 32: ops.append(lambda i=i: kvop(i + 1))
            if i in (18, 32): ops[-1] = both(ops[-1], lambda i=i: tok.__setitem__('C' if i == 18 else 'D', g.vtok()))
            at = put(at, *ops)
        for p_ in s.win_pairs(2, 0, R_TOP): at = put(at + 1, *p_)

        def wsp(u, xi, e):
            I(f'buffer_load_dwordx4 {ar((u * 16 + 2 * xi + e) * 4, 4)}, v{vSP + u}, {srd(S_WSP)}, s{sSX + xi} offen offset:{64 * e}')
        for i in range(16):
            put(61 + 3 * i, *s.img_pair(S_WO, R_H0A if i < 8 else R_H1A - 32768, i if i < 8 else i + 24, sIS, sIL))
        n = 0
        for xi in range(8):
            for u in range(4):
                put(18 + (13 * n) // 4, lambda u=u, xi=xi: wsp(u, xi, 0), lambda u=u, xi=xi: wsp(u, xi, 1)); n += 1
        for n, (sd, at) in enumerate(((S_WIN, 26), (S_WIN, 36), (S_WIN, 46), (S_WIN, 56), (S_WOUT, 84), (S_WOUT, 100))):
            put(at, lambda n=n: I(f's_add_u32 s{sR8}, s{sMA}, {128 * 4096 * (n & 3)}'), lambda sd=sd: I(f'buffer_load_dword v{vJ}, v{vB}, {srd(sd)}, s{sR8} offen'))
        put(70, lambda: I(f's_lshl_b32 s{sR8}, s{sJ}, 14\ns_add_u32 s{sR8}, s{sR8}, s{sGRP}'), lambda: I(f's_lshl_b32 s{sT1}, s{sW}, 12\ns_add_u32 s{sR8}, s{sR8}, s{sT1}'),
            lambda: I(f'buffer_load_dword v{vJ}, v{vB}, {srd(S_WS)}, s{sR8} offen'))
        for nt in range(4): put(116 + nt, lambda nt=nt: I(f'buffer_load_dwordx2 {vr(XR[nt], 2)}, v{vXA}, {srd(S_X)}, s{sROW} offen offset:{32 * nt}'))
        put(120, lambda: I(f'buffer_load_dwordx2 {vr(M2G, 2)}, v{vA}, {srd(S_WS)}, s{sA} offen sc1'))
        put(121, lambda: I(f'buffer_load_ushort v{vBS}, v{vBS}, {srd(S_BSP)}, s{sT3} offen'))
        bars = {1: 'B', 6: 'C', 15: 'D', 25: None}

        def after(t, q, m):
            for f in bg.get((t, q, m), []): f()
        for t in range(32):
            cur = t & 1; nx = cur ^ 1
            for q in range(4):
                S = Sb + 16 * (q & 1); Sn = Sb + 16 * ((q + 1) & 1); P = Pb + 8 * (q & 1); Pp = Pb + 8 * ((q + 1) & 1)
                first = (t == 0 and q == 0); last = (t == 31 and q == 3)
                qp = (q + 3) & 3; qn = (q + 1) & 3
                Vp = VF + 8 * (nx if q == 0 else cur)
                Kn = KF + 4 * (nx if q == 3 else cur)
                for i in range(8):
                    if i == 0 and q == 0 and t in (8, 16, 24): s.stamp(f'it{t}')
                    if i == 1 and not first: I(f'v_cvt_pk_bf16_f32 v{Pp + 7}, v{Sn + 14}, v{Sn + 15}')
                    if i == 2 and not last:
                        s.mf32(vr(Sn, 16), vr(Kn, 4), vr(Q + 4 * qn, 4), vr(CN + 16 * qn, 16))
                        if q == 0 and t in bars:
                            if bars[t]: g.wait(v=tok[bars[t]])
                            I('s_barrier')
                        after(t, q, 0)
                    if i == 5:
                        if not first: s.mf32(vr(Oa + 16 * qp, 16), vr(Vp + 4, 4), vr(Pp + 4, 4))
                        if t < 31:
                            if q == 0: I(f'ds_read_b128 {vr(KF + 4 * nx, 4)}, v{vK} offset:{REC * (t + 1)}')
                            if q == 1: I(f'ds_read_b128 {vr(VF + 8 * nx, 4)}, v{vV0} offset:{REC * (t + 1)}\nds_read_b128 {vr(VF + 8 * nx + 4, 4)}, v{vV1} offset:{REC * (t + 1)}')
                        after(t, q, 1)
                    if i == 7:
                        s.mf32(vr(Oa + 16 * q, 16), vr(VF + 8 * cur, 4), vr(P, 4), '0' if t == 0 else None)
                        if q == 2: g.wait_all(v=False, l=True)
                        after(t, q, 2)
                    I(f'v_exp_f32 v{S + 2 * i}, v{S + 2 * i}\nv_exp_f32 v{S + 2 * i + 1}, v{S + 2 * i + 1}')
                    if i > 0: I(f'v_cvt_pk_bf16_f32 v{P + i - 1}, v{S + 2 * i - 2}, v{S + 2 * i - 1}')
        I(f'v_cvt_pk_bf16_f32 v{Pb + 15}, v{Sb + 30}, v{Sb + 31}')
        s.mf32(vr(Oa + 48, 16), vr(VF + 12, 4), vr(Pb + 12, 4))
        s.stamp('attn', True)
        R.rel(CN, 64); R.rel(Sb, 32); R.rel(Pb, 16); R.rel(KF, 8); R.rel(VF, 16); R.rel(Q, 16); R.rel(vSP, 4)
        for r_ in (vK, vV0, vV1): R.rel(r_)
        vA4 = R.alloc(); vO = R.alloc(); vM = R.alloc()
        I(f's_mul_i32 s{sT2}, s{sW}, 4608\ns_add_u32 s{sT2}, s{sT2}, {R_H1B}\ns_xor_b32 s{sT1}, s{sW}, 1\ns_mul_i32 s{sT1}, s{sT1}, 4608\ns_add_u32 s{sT1}, s{sT1}, {R_H1B}\n'
          f'v_add_u32 v{vO}, s{sT2}, v{vL16}\nv_lshl_add_u32 v{vA4}, v{vL}, 2, s{sT2}')
        for hp in range(2):
            o_ = Oa + 16 * (2 + hp)
            I(f'ds_write_b128 v{vO}, {vr(o_, 4)} offset:{2304 * hp}\nds_write_b128 v{vO}, {vr(o_ + 4, 4)} offset:{2304 * hp + 1024}\nds_write_b32 v{vA4}, v{o_ + 8} offset:{2304 * hp + 2048}')
        L1 = g.label('m2ok')
        I(f'v_add_u32 v{vB}, s{sT1}, v{vL16}\nv_lshl_add_u32 v{t0}, v{vL}, 2, s{sT1}\nv_lshlrev_b32 v{vM}, 2, v0\nv_add_u32 v{vM}, {L_MODV}, v{vM}')
        g.wait_all(v=True, l=False)
        I(f'v_cmp_ne_u32 vcc, s{sE}, v{M2G + 1}\ns_cbranch_vccz {L1}')
        s.poll(lambda: I(f'buffer_load_dwordx2 {vr(M2G, 2)}, v{vA}, {srd(S_WS)}, s{sA} offen sc1'), lambda: I(f'v_cmp_ne_u32 vcc, s{sE}, v{M2G + 1}'))
        I(f'{L1}:\nds_write_b32 v{vM}, v{M2G}')
        g.wait_all(v=False, l=True)
        I('s_barrier')
        R.rel(M2G, 2); R.rel(vM)
        for hp in range(2):
            o_ = Oa + 16 * (2 + hp)
            I(f'ds_read_b32 v{o_ + 8}, v{t0} offset:{2304 * hp + 2048}\nds_read_b128 {vr(o_, 4)}, v{vB} offset:{2304 * hp}\nds_read_b128 {vr(o_ + 4, 4)}, v{vB} offset:{2304 * hp + 1024}')
        I(f'v_and_b32 v{t1}, 1, v{vGQ}\nv_lshlrev_b32 v{t1}, 14, v{t1}\nv_lshl_add_u32 v{t1}, v{vL15}, 4, v{t1}\nv_lshrrev_b32 v{t2}, 5, v{vL}\nv_lshl_add_u32 v{vA}, v{t2}, 8, v{t1}\n'
          f's_lshr_b32 s{sT1}, s{sW}, 1\ns_lshl_b32 s{sT1}, s{sT1}, 15\ns_add_u32 s{sT0}, s{sGRP}, s{sT1}\n'
          f's_lshl_b32 s{sT1}, s{sJ}, 11\ns_add_u32 s{sT0}, s{sT0}, s{sT1}\ns_and_b32 s{sT1}, s{sW}, 1\ns_lshl_b32 s{sT1}, s{sT1}, 10\ns_add_u32 s{sT0}, s{sT0}, s{sT1}\ns_add_u32 s{sA}, s{sT0}, {O}\n'
          f's_lshl_b32 s{sFR2}, s{sW}, 14\ns_add_u32 s{sFR2}, s{sFR2}, s{sGRP}')
        g.wait_all(v=False, l=True)
        for hp in range(2):
            a_ = Oa + 16 * hp; o_ = Oa + 16 * (2 + hp)
            I(f'v_add_f32 v{a_ + 8}, v{a_ + 8}, v{o_ + 8}\nv_rcp_f32 v{a_ + 8}, v{a_ + 8}')
            for i in range(0, 8, 2): I(f'v_pk_add_f32 {vr(a_ + i, 2)}, {vr(a_ + i, 2)}, {vr(o_ + i, 2)}')
            for i in range(0, 8, 2): I(f'v_pk_mul_f32 {vr(a_ + i, 2)}, {vr(a_ + i, 2)}, {vr(a_ + 8, 2)} op_sel_hi:[1,0]')
            for i in range(4): I(f'v_cvt_pk_bf16_f32 v{a_ + i}, v{a_ + 2 * i}, v{a_ + 2 * i + 1}')
        s.local_store(lambda f: I(f'buffer_store_dwordx4 {vr(Oa, 4)}, v{vA}, {srd(S_WS)}, s{sA} offen {f}\nbuffer_store_dwordx4 {vr(Oa + 16, 4)}, v{vA}, {srd(S_WS)}, s{sA} offen offset:512 {f}'))
        tO = g.vtok()
        for f in s.flat(s.win_pairs(2, 1, R_H0B)): f()
        R.rel(vA4); R.rel(vO)
        vIM = R.alloc(4); vIO = R.alloc(4); MV = R.alloc(16); XU = R.alloc(16)
        I(f'v_bfe_u32 v{t0}, v{vL}, 3, 2\nv_and_b32 v{t1}, 3, v{vL}\nv_lshlrev_b32 v{t1}, 3, v{t1}\nv_lshrrev_b32 v{t2}, 2, v{vL}\nv_lshl_add_u32 v{t1}, v{t2}, 7, v{t1}')
        for nt in range(4): I(f'v_xor_b32 v{t2}, {nt}, v{t0}\nv_lshl_add_u32 v{vIM + nt}, v{t2}, 5, v{t1}')
        I(f'v_lshrrev_b32 v{t2}, 5, v{vL}\nv_lshlrev_b32 v{t2}, 10, v{t2}')
        for nt in range(4): I(f'v_add_u32 v{vIO + nt}, v{vIM + nt}, v{t2}')
        I(f'v_lshlrev_b32 v{vB}, 4, v{vGQ}\nv_add_u32 v{vB}, {L_MODV}, v{vB}')
        for nt in range(4): I(f'ds_read_b128 {vr(MV + 4 * nt, 4)}, v{vB} offset:{64 * nt}')
        for nt in range(4):
            for e in range(2):
                I(f'v_lshlrev_b32 v{XU + 4 * nt + 2 * e}, 16, v{XR[nt] + e}\nv_and_b32 v{XU + 4 * nt + 2 * e + 1}, 0xffff0000, v{XR[nt] + e}')
        for r_ in XR: R.rel(r_, 2)
        s.stamp('ost')
        s.group_flag(OF, vtok=tO)
        R.rel(Oa, 64)
        s.stamp('oflag')
        if s.stop == 'attn': return s.finish()
        BF = R.alloc(64); side = {}
        tk = s.act_loads([BF + 4 * k for k in range(16)], sFR2, O, 16, 4, 5, side)
        s.spread(side, s.win_pairs(2, 2, R_H1B), 45, 2)
        DA = R.alloc(16)
        jobs = []
        for k in range(16):
            for nt in range(4):
                o1 = 4096 * (k & 7)
                jobs.append(dict(addr=vIO + nt, o1=o1, o2=o1 + 1024, act=vr(BF + 4 * k, 4), vtok=tk[k], acc=DA + 4 * nt, first=(k == 0), wfirst=True))

        def bump():
            for nt in range(4): I(f'v_add_u32 v{vIO + nt}, {R_H1A}, v{vIO + nt}')
        bump.fence = True
        s.gemm(jobs, hooks={32: bump}, side=side)
        I('s_barrier')
        R.rel(vIO, 4)
        X1 = R.alloc(8)
        sm, sq = R.alloc(), R.alloc()
        I(f'v_mov_b32 v{sm}, 0\nv_mov_b32 v{sq}, 0')
        for i in range(0, 16, 2):
            I(f'v_pk_fma_f32 {vr(DA + i, 2)}, {vr(DA + i, 2)}, {vr(MV + i, 2)}, {vr(XU + i, 2)}')
        for i in range(8): I(f'v_cvt_pk_bf16_f32 v{X1 + i}, v{DA + 2 * i}, v{DA + 2 * i + 1}')
        for i in range(8): I(f'v_dot2c_f32_bf16 v{sm}, s{sONES}, v{X1 + i}\nv_dot2c_f32_bf16 v{sq}, v{X1 + i}, v{X1 + i}')
        s.stamp('dgemm')

        def win1():
            for nt in range(4): I(f'ds_read_b128 {vr(MV + 4 * nt, 4)}, v{vB} offset:{512 + 64 * nt}')
            for nt in range(4): I(f'ds_read_b128 {vr(DA + 4 * nt, 4)}, v{vB} offset:{256 + 64 * nt}')
            for i in range(8): I(f'v_lshlrev_b32 v{XU + 2 * i}, 16, v{X1 + i}\nv_and_b32 v{XU + 2 * i + 1}, 0xffff0000, v{X1 + i}')
        s.stats_exchange(ST1, sm, sq, 512, [win1])
        s.stamp('st1')
        g.wait_all(v=False, l=True)
        pr = R.alloc(4)
        I(f'v_mov_b32 v{pr}, v{sq}\nv_mov_b32 v{pr + 2}, v{sm}')
        I(f's_lshl_b32 s{sT0}, s{sJ}, 11\ns_add_u32 s{sT0}, s{sT0}, s{sFR2}\ns_add_u32 s{sA}, s{sT0}, {H2}')
        for i in range(0, 16, 2):
            I(f'v_pk_fma_f32 {vr(XU + i, 2)}, {vr(XU + i, 2)}, {vr(pr, 2)}, {vr(pr + 2, 2)} op_sel_hi:[1,0,0]')
        for i in range(0, 16, 2):
            I(f'v_pk_fma_f32 {vr(XU + i, 2)}, {vr(XU + i, 2)}, {vr(MV + i, 2)}, {vr(DA + i, 2)}')
        for i in range(8): I(f'v_cvt_pk_bf16_f32 v{XU + i}, v{XU + 2 * i}, v{XU + 2 * i + 1}')
        s.local_store(lambda f: I(f'buffer_store_dwordx4 {vr(XU, 4)}, v{vL16}, {srd(S_WS)}, s{sA} offen {f}\nbuffer_store_dwordx4 {vr(XU + 4, 4)}, v{vL16}, {srd(S_WS)}, s{sA} offen offset:1024 {f}'))
        tH = g.vtok()
        for f in s.flat(s.win_pairs(2, 3, R_H0A)): f()
        vE = R.alloc(3, align=1)
        I(f'v_lshrrev_b32 v{t0}, 2, v{vL}\nv_mul_u32_u24 v{t0}, 224, v{t0}\nv_and_b32 v{t1}, 3, v{vL}\nv_lshl_add_u32 v{vE}, v{t1}, 3, v{t0}\n'
          f'v_add_u32 v{vE + 1}, 0xe000, v{vE}\nv_add_u32 v{vE + 2}, 0x1c000, v{vE}')
        s.group_flag(H2F, vtok=tH)
        R.rel(pr, 4); R.rel(XU, 16); R.rel(DA, 16); R.rel(MV, 16)
        s.stamp('h2flag')
        if s.stop == 'h2': return s.finish()
        side = {}
        tk = s.act_loads([BF + 4 * k for k in range(16)], sFR2, H2, 16, 4, 4, side)

        def ejobs(regions, acc, tk):
            jb = []
            for k in range(16):
                base = regions[k >> 2] + 7168 * (k & 3)
                sel = base // 0xe000; off = base - sel * 0xe000
                if off + 7168 > 65535: raise RuntimeError('offset')
                for ft in range(7):
                    jb.append(dict(addr=vE + sel, o1=off + 32 * ft, o2=off + 16 * 224 + 32 * ft, act=vr(BF + 4 * k, 4), vtok=tk[k] if tk else None,
                                   acc=acc + 4 * ft, first=(k == 0), wfirst=True))
            return jb
        Z2 = R.alloc(28)

        def mid2():
            g.wait_all(v=False, l=True)
            I('s_barrier')
        mid2.fence = True
        e_ = s.spread(side, s.win_pairs(1, 0, R_H1A), 50, 4)
        side.setdefault(e_, []).append(lambda: tok.__setitem__('z10', g.vtok()))
        s.spread(side, s.win_pairs(1, 1, R_TOP), e_ + 1, 4)
        s.gemm(ejobs([R_TOP, R_H0B, R_H1B, R_H0A], Z2, tk), hooks={56: mid2}, side=side)
        g.wait(v=tok['z10'])
        I('s_barrier')
        s.stamp('z2gemm')
        ops, rel = s.gelu_ops(Z2, 28)
        dm = s.win_pairs(1, 2, R_H0B)
        for n, o in enumerate(ops):
            I(o)
            if n % 18 == 5:
                for f in dm.pop(0): f()
        rel()
        I(f'v_mov_b32 v{sm}, 0\nv_mov_b32 v{sq}, 0')
        for i in range(14): I(f'v_cvt_pk_bf16_f32 v{Z2 + i}, v{Z2 + 2 * i}, v{Z2 + 2 * i + 1}')
        for i in range(14): I(f'v_dot2c_f32_bf16 v{sm}, s{sONES}, v{Z2 + i}\nv_dot2c_f32_bf16 v{sq}, v{Z2 + i}, v{Z2 + i}')
        ZU = R.alloc(28); vZS = R.alloc(); Z1 = R.alloc(28)
        z1jobs = ejobs([R_H1A, R_TOP, R_H0B, R_H1B], Z1, None)
        s.stamp('gelu2')

        def win2():
            s.gemm(z1jobs[:28])
            for i in range(14): I(f'v_lshlrev_b32 v{ZU + 2 * i}, 16, v{Z2 + i}\nv_and_b32 v{ZU + 2 * i + 1}, 0xffff0000, v{Z2 + i}')
            I(f's_mul_i32 s{sT0}, s{sW}, 3584\ns_add_u32 s{sT0}, s{sT0}, {R_H0A}\nv_mul_u32_u24 v{vA}, 224, v{vL15}\nv_lshl_add_u32 v{vA}, v{vGQ}, 3, v{vA}\nv_add_u32 v{vA}, s{sT0}, v{vA}')
            I(f'v_and_b32 v{t0}, 1, v{vGQ}\nv_lshlrev_b32 v{t0}, 3, v{t0}\nv_bfe_u32 v{t1}, v{vL}, 2, 2\nv_add_u32 v{t0}, v{t0}, v{t1}\nv_mul_u32_u24 v{t0}, 224, v{t0}\n'
              f'v_and_b32 v{t1}, 3, v{vL}\nv_lshl_add_u32 v{t0}, v{t1}, 3, v{t0}\nv_add_u32 v{t1}, s{sT0}, v{t0}\nv_lshrrev_b32 v{t2}, 5, v{vL}\nv_lshl_add_u32 v{t0}, v{t2}, 5, v{t1}')
            I(f'v_and_b32 v{vZS}, 31, v{vL}\nv_lshlrev_b32 v{vZS}, 4, v{vZS}\nv_lshl_add_u32 v{vZS}, v{t2}, 16, v{vZS}\n'
              f's_mul_i32 s{sT3}, s{sJ}, {7 * 65536}\ns_lshl_b32 s{sT1}, s{sG}, 11\ns_add_u32 s{sT3}, s{sT3}, s{sT1}\ns_lshl_b32 s{sT1}, s{sW}, 9\ns_add_u32 s{sT3}, s{sT3}, s{sT1}\ns_add_u32 s{sT3}, s{sT3}, {Z2N}')
        s.stats_exchange(ST2, sm, sq, 896, [win2])
        s.stamp('st2')
        pr = R.alloc(4)
        I(f'v_mov_b32 v{pr}, v{sq}\nv_mov_b32 v{pr + 2}, v{sm}')
        for ft in range(7):
            for e in range(2):
                i = 4 * ft + 2 * e
                I(f'v_pk_fma_f32 {vr(ZU + i, 2)}, {vr(ZU + i, 2)}, {vr(pr, 2)}, {vr(pr + 2, 2)} op_sel_hi:[1,0,0]')
            I(f'v_cvt_pk_bf16_f32 v{Z2 + 2 * ft}, v{ZU + 4 * ft}, v{ZU + 4 * ft + 1}\nv_cvt_pk_bf16_f32 v{Z2 + 2 * ft + 1}, v{ZU + 4 * ft + 2}, v{ZU + 4 * ft + 3}\n'
              f'ds_write_b64 v{vA}, {vr(Z2 + 2 * ft, 2)} offset:{32 * ft}')
        g.wait_all(v=False, l=True)
        tr = []
        for p in range(4):
            ad = t0 if p < 3 else t1
            I(f'ds_read_b64_tr_b16 {vr(ZU + 4 * p, 2)}, v{ad} offset:{64 * p}\nds_read_b64_tr_b16 {vr(ZU + 4 * p + 2, 2)}, v{ad} offset:{64 * p + 4 * 224}'); tr.append(g.ltok())
        for p in range(4):
            g.wait(l=tr[p])
            if p == 3: s.setexec(0xffffffff)
            I(f'buffer_store_dwordx4 {vr(ZU + 4 * p, 4)}, v{vZS}, {srd(S_WS)}, s{sT3} offen sc1')
            if p < 3: I(f's_add_u32 s{sT3}, s{sT3}, {2 * 65536}')
        s.setexec(-1)
        tZ = g.vtok()
        s.stamp('z2st')
        for f in s.flat(s.win_pairs(1, 3, R_H1B)): f()
        tz13 = g.vtok()
        R.rel(pr, 4); R.rel(ZU, 28); R.rel(sm); R.rel(sq); R.rel(vZS); R.rel(Z2, 28)
        fa, fe = R.alloc(), R.alloc()
        I(f's_lshl_b32 s{sIL}, s{sW}, 10\ns_lshl_b32 s{sIS}, s{sIL}, 3\ns_add_u32 s{sIS}, s{sIS}, s{s.sJ128}')
        I(f's_lshl_b32 s{sT0}, s{sJ}, 5\ns_add_u32 s{sT0}, s{sT0}, s{sG}\ns_lshl_b32 s{sT0}, s{sT0}, 5\ns_add_u32 s{sB}, s{sT0}, {ZF}\nv_mov_b32 v{fe}, s{sE}\nv_mov_b32 v{fa}, 0')
        I('s_barrier')

        def wo_pairs(chunks): return [s.img_pair(S_WOUT, 0, c, sIS, sIL) for c in chunks]

        def h4():
            g.wait(v=tZ); g.wait_all(v=False, l=True); I('s_barrier')

            def zflag():
                I(f's_mov_b64 exec, 1\nbuffer_store_dword v{fe}, v{fa}, {srd(S_WS)}, s{sB} offen sc1\ns_mov_b64 exec, -1')
            g.branches([(f's_cmp_eq_u32 s{sW}, 0', zflag)])
            s.stamp('zflag')
        h4.fence = True

        def h12():
            g.wait(v=tz13); g.wait_all(v=False, l=True); I('s_barrier')
        h12.fence = True
        side = {}
        s.spread(side, wo_pairs(list(range(0, 32, 4)) + [61, 93] + list(range(65, 93, 4))), 0, 3)
        s.spread(side, wo_pairs(list(range(32, 60, 4)) + [57]), 57, 3)
        s.gemm(z1jobs[28:], hooks={42: h4, 56: h12}, side=side)
        I('s_barrier')
        for f in s.flat(wo_pairs([97, 101, 105, 108])): f()
        R.rel(BF, 64); R.rel(vE, 3); R.rel(s.vWIN, 7)
        s.stamp('z1')
        if s.stop == 'z': return s.finish()
        I(f's_lshl_b32 s{sT0}, s{sJ}, 5\ns_add_u32 s{sT0}, s{sT0}, s{sW}\ns_lshl_b32 s{sT0}, s{sT0}, 5\ns_add_u32 s{sA}, s{sT0}, {ZF}\nv_lshlrev_b32 v{fa}, 7, v{vL}')
        I(f's_mul_i32 s{sT0}, s{sJ}, {7 * 65536}\ns_lshl_b32 s{sT1}, s{sW}, 11\ns_add_u32 s{sT0}, s{sT0}, s{sT1}\ns_add_u32 s{sT0}, s{sT0}, {Z2N}')
        for xi in range(8): I(f's_lshl_b32 s{sSX + xi}, s{sSX + xi}, 4\ns_add_u32 s{sSX + xi}, s{sSX + xi}, s{sT0}')
        vZ = fe
        I(f'v_mov_b32 v{vZ}, v{vL16}')
        s.flag_poll(fa, 8, f's{sA}')
        s.stamp('zgot')
        RES = R.alloc(28); TA = R.alloc(24); RD = R.alloc(12)
        gops, grel = s.gelu_ops(Z1, 28, packed=False)
        vRW = R.alloc(3, align=1); vRR = R.alloc()
        NR = 26; RG = [R.alloc(4) for _ in range(NR)]; ft_ = []

        def fload(i):
            p, k = divmod(i, 16)
            if k == 0 and p > 0 and 'fsame' not in s.opt: I(f'v_add_u32 v{vZ}, 0x10000, v{vZ}')
            I(f'buffer_load_dwordx4 {vr(RG[i % NR], 4)}, v{vZ}, {srd(S_WS)}, s{sSX + (k >> 1)} offen offset:{1024 * (k & 1)} {"" if "fplain" in s.opt else "sc1"}'); ft_.append(g.vtok())
        PRE = 10
        for i in range(PRE): fload(i)
        for u in range(1, 4):
            I(f's_add_u32 s{sT0}, s{sW}, {u}\ns_and_b32 s{sT0}, s{sT0}, 3\ns_mul_i32 s{sT0}, s{sT0}, 3072\ns_add_u32 s{sT0}, s{sT0}, {L_RED + 1024 * (u - 1)}\nv_add_u32 v{vRW + u - 1}, s{sT0}, v{vL16}')
        I(f's_mul_i32 s{sT0}, s{sW}, 3072\ns_add_u32 s{sT0}, s{sT0}, {L_RED}\nv_add_u32 v{vRR}, s{sT0}, v{vL16}\nv_lshlrev_b32 v{vBS}, 16, v{vBS}')

        def red_write(p):
            for u in range(1, 4): I(f'ds_write_b128 v{vRW + u - 1}, {vr(TA + 12 * (p & 1) + 4 * (u - 1), 4)} offset:{12288 * (p & 1)}')

        def red_read(p):
            for u in range(3): I(f'ds_read_b128 {vr(RD + 4 * u, 4)}, v{vRR} offset:{12288 * (p & 1) + 1024 * u}')

        def red_add(p):
            return [f'v_add_f32 v{RES + 4 * p + e}, v{RES + 4 * p + e}, v{RD + 4 * u + e}' for u in range(3) for e in range(4)]

        def ymul(p):
            o = [f'v_add_f32 v{RES + 4 * p + e}, v{RES + 4 * p + e}, v{vBS}' for e in range(4)]
            o += [f'v_mul_f32 v{RES + 4 * p + e}, v{RES + 4 * p + e}, v{Z1 + 4 * p + e}' for e in range(4)]
            return o + [f'v_cvt_pk_bf16_f32 v{Z1 + 2 * p}, v{RES + 4 * p}, v{RES + 4 * p + 1}', f'v_cvt_pk_bf16_f32 v{Z1 + 2 * p + 1}, v{RES + 4 * p + 2}, v{RES + 4 * p + 3}']
        fill = list(gops); nxt = PRE
        for i in range(112):
            p, k = divmod(i, 16)
            g.wait(v=ft_[i])
            if k == 0 and 'fst' in s.opt: s.stamp(f'f{p}')
            for u in range(4):
                acc = vr(RES + 4 * p, 4) if u == 0 else vr(TA + 12 * (p & 1) + 4 * (u - 1), 4)
                s.mf16(acc, vr(RG[i % NR], 4), ar((u * 16 + k) * 4, 4), '0' if k == 0 else None)
                if u == 0:
                    for _ in range(2 if nxt < i + NR - 1 else 1):
                        if nxt < 112 and nxt < i + NR: fload(nxt); nxt += 1
                elif u == 1 and p > 0 and k == 2: red_write(p - 1)
                elif u == 1 and p > 0 and k == 6: g.wait_all(v=False, l=True); I('s_barrier'); red_read(p - 1)
                elif u == 1 and p > 0 and k == 10:
                    g.wait_all(v=False, l=True); fill = red_add(p - 1) + fill
                    pend = ymul(2 * (p - 4)) + ymul(2 * (p - 4) + 1) if p >= 4 else []
                    fill += pend
                elif fill:
                    o = fill.pop(0); I(o)
                    if fill and 'exp' not in o and 'rcp' not in o and 'exp' not in fill[0] and 'rcp' not in fill[0]: I(fill.pop(0))
        for o in fill: I(o)
        grel()
        red_write(6)
        I(f's_mul_i32 s{sB}, s{sW}, 28672\ns_add_u32 s{sB}, s{sB}, s{sGRP}\n'
          f's_lshr_b32 s{sT0}, s{sJ}, 1\ns_mul_i32 s{sT0}, s{sT0}, 7168\ns_add_u32 s{sT0}, s{sT0}, s{sB}\ns_and_b32 s{sT1}, s{sJ}, 1\ns_mul_i32 s{sT2}, s{sT1}, 3072\n'
          f's_add_u32 s{sA}, s{sT0}, s{sT2}\ns_lshl_b32 s{sT1}, s{sT1}, 3\ns_add_u32 s{sT0}, s{sT0}, s{sT1}\ns_add_u32 s{sT2}, s{sT0}, 6144')

        def yst(f):
            for i in range(3): I(f'buffer_store_dwordx4 {vr(Z1 + 4 * i, 4)}, v{vL16}, {srd(S_WS)}, s{sA} offen offset:{1024 * i} {f}')
        s.local_store(yst)
        g.wait_all(v=False, l=True); I('s_barrier'); red_read(6)
        for r_ in RG: R.rel(r_, 4)
        g.wait_all(v=False, l=True)
        for o in red_add(6) + ymul(6): I(o)
        s.local_store(lambda f: I(f'buffer_store_dwordx2 {vr(Z1 + 12, 2)}, v{vL16}, {srd(S_WS)}, s{sT2} offen {f}'))
        s.stamp('fgemm')
        vI2 = R.alloc(4); MV = R.alloc(16); XU = R.alloc(16)
        for nt in range(4): I(f'v_add_u32 v{vI2 + nt}, 0xe000, v{vIM + nt}')
        for nt in range(4): I(f'ds_read_b128 {vr(MV + 4 * nt, 4)}, v{vB} offset:{768 + 64 * nt}')
        for i in range(8): I(f'v_lshlrev_b32 v{XU + 2 * i}, 16, v{X1 + i}\nv_and_b32 v{XU + 2 * i + 1}, 0xffff0000, v{X1 + i}')
        s.group_flag(YF)
        for x_, n_ in ((RES, 28), (TA, 24), (RD, 12), (Z1, 28), (vRW, 3), (vRR, 1), (fa, 1), (fe, 1)): R.rel(x_, n_)
        s.stamp('yflag')
        YB = [R.alloc(4) for _ in range(28)]; side = {}
        tk = s.act_loads(YB, sB, 0, 28, 4, 5, side)
        GA = R.alloc(16)
        jobs = []
        for k in range(28):
            P_, i = divmod(k, 7)
            ta, tb = (14 * P_ + 2 * i, 14 * P_ + 2 * i + 1) if i < 3 else ((14 * P_ + 2 * i + 1, 14 * P_ + 2 * i + 2) if i < 6 else (14 * P_ + 6, 14 * P_ + 13))
            hi = P_ >= 2
            for nt in range(4):
                jobs.append(dict(addr=(vI2 if hi else vIM) + nt, o1=2048 * ta - (0xe000 if hi else 0), o2=2048 * tb - (0xe000 if hi else 0),
                                 act=vr(YB[k], 4), vtok=tk[k], acc=GA + 4 * nt, first=(k == 0), wfirst=True))
        s.gemm(jobs, side=side)
        of = 'sc1' if 'outsc1' in s.opt else ('nt' if 'outnt' in s.opt else '')
        for nt in range(4):
            for i in (4 * nt, 4 * nt + 2):
                I(f'v_pk_fma_f32 {vr(GA + i, 2)}, {vr(GA + i, 2)}, {vr(MV + i, 2)}, {vr(XU + i, 2)}')
            I(f'v_cvt_pk_bf16_f32 v{GA + 4 * nt}, v{GA + 4 * nt}, v{GA + 4 * nt + 1}\nv_cvt_pk_bf16_f32 v{GA + 4 * nt + 1}, v{GA + 4 * nt + 2}, v{GA + 4 * nt + 3}\n'
              f'buffer_store_dwordx2 {vr(GA + 4 * nt, 2)}, v{vXA}, {srd(S_OUT)}, s{sROW} offen offset:{32 * nt} {of}')
        return s.finish()


HEADER = open(os.path.join(os.path.dirname(os.path.abspath(__file__)), '..', 'cdna_kernels', NAME + '.s.ref')).read().split('; Override launch')[0]


def render(**kw):
    k = K(**kw)
    k.build()
    k.g.pad_hazards()
    fixed, left, size = k.g.align8()
    txt = HEADER + f'; @launch grid=(256,1,1) block=(256,1,1) lds={LDS_BYTES}\n'
    txt += f'.amdgcn_target "amdgcn-amd-amdhsa--gfx950"\n.text\n.globl {NAME}_kernel\n.p2align 8\n.type {NAME}_kernel,@function\n{NAME}_kernel:\n'
    txt += k.g.text()
    txt += f'''.section .rodata,"a"
.p2align 6
.amdhsa_kernel {NAME}_kernel
  .amdhsa_next_free_vgpr 512
  .amdhsa_next_free_sgpr 102
  .amdhsa_accum_offset 256
  .amdhsa_group_segment_fixed_size 0
  .amdhsa_kernarg_size 120
  .amdhsa_user_sgpr_count 2
  .amdhsa_user_sgpr_kernarg_segment_ptr 1
  .amdhsa_system_sgpr_workgroup_id_x 1
.end_amdhsa_kernel
'''
    return txt, k, (fixed, left, size)


if __name__ == '__main__':
    import argparse
    ap = argparse.ArgumentParser()
    ap.add_argument('-o', default=None); ap.add_argument('--stop', default=None); ap.add_argument('--stamps', action='store_true')
    ap.add_argument('--opt', default=''); ap.add_argument('--slow', action='store_true'); ap.add_argument('--mode', type=int, default=None)
    a = ap.parse_args()
    txt, k, info = render(stop=a.stop, stamps=a.stamps, force_slow=a.slow, force_mode=a.mode, opt=a.opt.split(','))
    out = a.o or os.path.join(os.path.dirname(os.path.abspath(__file__)), '..', 'cdna_kernels', NAME + '.s')
    open(out, 'w').write(txt)
    if a.stamps: open(out + '.names', 'w').write(' '.join(k.names))
    print('wrote', out, 'aligned/left/bytes', info, 'instrs', sum(isinstance(i, Ins) for i in k.g.items))
```

```python
import re, subprocess, os

TRANS = ('v_exp_f32','v_log_f32','v_rcp_f32','v_rsq_f32','v_sqrt_f32','v_sin_f32','v_cos_f32')
PROMOTE = ('v_exp_f32','v_rcp_f32','v_rsq_f32','v_sqrt_f32','v_mov_b32','v_add_f32','v_sub_f32','v_mul_f32','v_max_f32','v_min_f32',
           'v_add_u32','v_lshlrev_b32','v_and_b32','v_or_b32','v_xor_b32','v_lshrrev_b32')

def regs_of(op):
    op = op.strip()
    neg = op.lstrip('-')
    m = re.fullmatch(r'(?:abs\()?([vas])(\d+)\)?', neg)
    if m: return {(m.group(1), int(m.group(2)))}
    m = re.fullmatch(r'([vas])\[(\d+):(\d+)\]', neg)
    if m: return {(m.group(1), i) for i in range(int(m.group(2)), int(m.group(3))+1)}
    if op == 'vcc': return {('s','vcc')}
    if op == 'm0': return {('s','m0')}
    if op == 'exec': return {('s','exec')}
    return set()

class Ins:
    __slots__=('text','mn','cls','wr','rd','mA','mB','mC','mD','passes','dpp','size','wide_store','lds_dma','perm','rl','srd_rd','dotab')
    def __init__(s, text):
        s.text = text
        t = text.split(';')[0].strip()
        parts = t.split(None,1)
        mn = parts[0]; s.mn = mn
        rest = parts[1] if len(parts)>1 else ''
        ops=[]; depth=0; cur=''
        for ch in rest:
            if ch in '[(': depth+=1
            if ch in '])': depth-=1
            if ch==',' and depth==0: ops.append(cur.strip()); cur=''
            else: cur+=ch
        if cur.strip(): ops.append(cur.strip())
        mods=''
        if ops:
            last=ops[-1].split(None,1)
            ops[-1]=last[0]
            if len(last)>1: mods=last[1]
        s.wr=set(); s.rd=set(); s.mA=s.mB=s.mC=s.mD=set(); s.passes=0; s.dpp=False; s.size=None
        s.wide_store=False; s.lds_dma=False; s.perm=False; s.rl=False; s.srd_rd=set(); s.dotab=set()
        base = re.sub(r'_(e32|e64|dpp|sdwa)$','',mn)
        R=[regs_of(o) for o in ops]
        if mn.startswith('v_mfma'):
            s.cls='mfma'; s.mD,s.mA,s.mB,s.mC=R[0],R[1],R[2],R[3]
            s.wr=set(R[0]); s.rd=R[1]|R[2]|R[3]; s.passes = 8 if '32x32' in mn else 4
        elif mn.startswith('v_'):
            s.cls='trans' if base in TRANS else 'valu'
            s.dpp = mn.endswith('_dpp')
            if base.startswith('v_permlane'):
                s.perm=True; s.wr=R[0]|R[1]; s.rd=R[0]|R[1]
            elif base.startswith('v_cmp'):
                s.wr=set(R[0]); s.rd=set().union(*R[1:])
            elif base in('v_readfirstlane_b32','v_readlane_b32'):
                s.rl=True; s.wr=set(R[0]); s.rd=set().union(*R[1:])
            else:
                s.wr=set(R[0]); s.rd=set().union(*R[1:]) if len(R)>1 else set()
                if base=='v_dot2c_f32_bf16': s.dotab=set(s.rd)
                if base in('v_fmac_f32','v_dot2c_f32_bf16') or s.dpp: s.rd|=R[0]
                if base in('v_add_co_u32','v_addc_co_u32'): s.wr|=R[1]
        elif mn.startswith('ds_'):
            s.cls='ds'
            if mn.startswith('ds_read') or mn.startswith('ds_bpermute') or mn.startswith('ds_swizzle'):
                s.wr=set(R[0]); s.rd=set().union(*R[1:])
            else: s.rd=set().union(*R)
        elif mn.startswith('buffer_') or mn.startswith('global_'):
            s.cls='vmem'
            if 'load' in mn:
                if re.search(r'\blds\b',mods): s.lds_dma=True; s.rd=set().union(*R)|{('s','m0')}
                else: s.wr=set(R[0]); s.rd=set().union(*R[1:])
            else:
                s.rd=set().union(*R)
                if mn.endswith('x3') or mn.endswith('x4'): s.wide_store=True; s.mD = R[0] if mn.startswith('buffer_') else R[1]
        elif mn.startswith('s_load') or mn.startswith('s_memtime') or mn.startswith('s_memrealtime'):
            s.cls='smem'; s.wr=set(R[0]); s.rd=set().union(*R[1:]) if len(R)>1 else set()
        elif mn.startswith('s_'):
            s.cls='salu'
            if mn in('s_nop','s_waitcnt','s_barrier','s_sleep','s_endpgm','s_setprio') or mn.startswith('s_cbranch') or mn=='s_branch' or mn.startswith('s_cmp'):
                s.rd=set().union(*R) if R else set()
            else:
                s.wr=set(R[0]) if R else set(); s.rd=set().union(*R[1:]) if len(R)>1 else set()
                if 'saveexec' in mn: s.wr|={('s','exec')}
        else:
            raise ValueError('unknown instr '+text)
    def slots(s):
        if s.mn=='s_nop': return int(s.text.split()[1])+1
        return 1

def isv(r): return r[0] in 'va'
def need(p, c):
    n=0
    pv = p.cls in('valu','trans')
    if pv:
        wv={r for r in p.wr if isv(r)}; ws={r for r in p.wr if not isv(r)}
        if c.cls=='mfma' and wv & c.rd: n=max(n,2)
        if c.cls in('valu','trans'):
            if (c.perm or c.dpp) and wv & c.rd: n=max(n,2)
            if c.rl and wv & c.rd: n=max(n,1)
            if p.cls=='trans' and c.cls=='valu' and wv & c.rd: n=max(n,1)
            if ws & c.rd: n=max(n,4 if c.rl else 2)
        if c.cls=='vmem' and ws & c.rd: n=max(n,5)
        if c.cls=='salu' and ws & c.rd: n=max(n,1)
    if pv and p.mn.startswith('v_dot'):
        wv={r for r in p.wr if isv(r)}
        if c.cls in('valu','trans','ds','vmem','mfma') and wv & (c.rd|c.wr):
            same = re.sub(r'_(e32|e64)$','',c.mn)==re.sub(r'_(e32|e64)$','',p.mn)
            acc_only = same and c.mn.startswith('v_dot2c') and not (wv & c.dotab)
            if not acc_only: n=max(n,3)
    if p.cls=='mfma':
        big = 12 if p.passes==8 else 8
        if c.cls=='mfma':
            if p.mD & (c.mA|c.mB): n=max(n,big)
            if p.mD & c.mC and not (p.mD==c.mC and p.passes==c.passes): n=max(n,big-2)
            if p.mD & c.mD and not (p.mD==c.mC): n=max(n,big-2)
        elif c.cls in('valu','trans','ds','vmem'):
            if p.mD & (c.rd|c.wr): n=max(n,big)
            if c.cls in('valu','trans') and p.mC & c.wr: n=max(n,7 if p.passes==8 else 3)
    if p.cls=='salu' and ('s','m0') in p.wr and c.lds_dma: n=max(n,1)
    if p.wide_store and p.mD & c.wr: n=max(n,2)
    return n

class Gen:
    def __init__(s):
        s.items=[]
        s.vm=0; s.vm_done=0; s.lg=0; s.lg_done=0
        s.uid=0
    def I(s,text):
        for t in text.split('\n'):
            t=t.strip()
            if not t or t.startswith(';'): continue
            if t.endswith(':'): s.items.append(('label',t[:-1])); continue
            if t.startswith('.'): s.items.append(('raw',t)); continue
            ins=Ins(t); s.items.append(ins)
            if ins.cls=='vmem': s.vm+=1
            elif ins.cls=='ds': s.lg+=1
            elif ins.cls=='smem': s.lg+=2
        return s
    def U(s,text):
        s.items.append(Ins(text))
    def label(s,base):
        s.uid+=1; return f'L_{base}_{s.uid}'
    def vtok(s): return s.vm
    def ltok(s): return s.lg
    def wait(s, v=None, l=None):
        parts=[]
        if v is not None and v>s.vm_done:
            n=min(s.vm-v,63); parts.append(f'vmcnt({n})'); s.vm_done=max(s.vm_done,s.vm-n)
        if l is not None and l>s.lg_done:
            n=min(s.lg-l,15); parts.append(f'lgkmcnt({n})'); s.lg_done=max(s.lg_done,s.lg-n)
        if parts: s.items.append(Ins('s_waitcnt '+' '.join(parts)))
    def wait_all(s, v=True, l=True, force=False):
        parts=[]
        if v and (force or s.vm>s.vm_done): parts.append('vmcnt(0)'); s.vm_done=s.vm
        if l and (force or s.lg>s.lg_done): parts.append('lgkmcnt(0)'); s.lg_done=s.lg
        if parts: s.items.append(Ins('s_waitcnt '+' '.join(parts)))
    def state(s): return (s.vm,s.vm_done,s.lg,s.lg_done)
    def branches(s, conds):
        end=s.label('join'); st=s.state(); outs=[]
        for i,(c,fn) in enumerate(conds):
            s.vm,s.vm_done,s.lg,s.lg_done=st
            nxt=None
            if c is not None:
                nxt=s.label('arm'); s.I(c); s.I(f's_cbranch_scc0 {nxt}')
            fn()
            outs.append(s.state())
            if i!=len(conds)-1: s.I(f's_branch {end}')
            if nxt: s.I(nxt+':')
        if conds[-1][0] is not None: outs.append(st)
        s.I(end+':')
        s.vm=min(o[0] for o in outs); s.lg=min(o[2] for o in outs)
        s.vm_done=min(min(o[1],s.vm) if o[1]<o[0] else s.vm for o in outs) if True else 0
        s.lg_done=min(min(o[3],s.lg) if o[3]<o[2] else s.lg for o in outs)
        s.extra_vm = any(o[1]<o[0] for o in outs)
        if s.extra_vm and s.vm_done>=s.vm: s.vm_done=s.vm-1 if s.vm>0 else 0
        if any(o[3]<o[2] for o in outs) and s.lg_done>=s.lg: s.lg_done=s.lg-1

    def pad_hazards(s):
        out=[]; W=24
        for it in s.items:
            if isinstance(it,Ins):
                dist=0; req=0
                for p in reversed(out):
                    if not isinstance(p,Ins): continue
                    if p.mn=='s_branch' or p.mn=='s_endpgm': break
                    n=need(p,it)
                    if n>dist: req=max(req,n-dist)
                    dist+=p.slots()
                    if dist>=W: break
                while req>0:
                    k=min(req,16); out.append(Ins(f's_nop {k-1}')); req-=k
            out.append(it)
        s.items=out
        lab={it[1]:i for i,it in enumerate(out) if not isinstance(it,Ins) and it[0]=='label'}
        for i,it in enumerate(out):
            if isinstance(it,Ins) and (it.mn=='s_branch' or it.mn.startswith('s_cbranch')):
                tgt=it.text.split()[1]
                if tgt not in lab: continue
                before=[]; d=0
                for p in reversed(out[:i+1]):
                    if isinstance(p,Ins):
                        before.append((p,d)); d+=p.slots()
                        if d>=W: break
                d2=0
                for c in out[lab[tgt]:]:
                    if not isinstance(c,Ins): continue
                    for p,dp in before:
                        if need(p,c)>dp+d2:
                            raise RuntimeError(f'branch-edge hazard: {p.text} -> {c.text} via {it.text}')
                    d2+=c.slots()
                    if d2>=W or c.mn=='s_branch': break
    def text(s):
        o=[]
        for it in s.items:
            if isinstance(it,Ins): o.append('  '+it.text)
            elif it[0]=='label': o.append(it[1]+':')
            else: o.append(it[1])
        return '\n'.join(o)+'\n'
    def sizes(s):
        src='.amdgcn_target "amdgcn-amd-amdhsa--gfx950"\n.text\nkk:\n'+s.text()
        open('_sz.s','w').write(src)
        r=subprocess.run(['clang','-x','assembler','-target','amdgcn-amd-amdhsa','-mcpu=gfx950','-c','_sz.s','-o','_sz.o'],capture_output=True,text=True)
        if r.returncode: print(r.stderr[:4000]); raise SystemExit(1)
        d=subprocess.run(['llvm-objdump','-d','--mcpu=gfx950','_sz.o'],capture_output=True,text=True).stdout
        sz=[]
        for l in d.split('\n'):
            m=re.search(r'// ([0-9A-F]{12}): ((?:[0-9A-F]{8} ?)+)',l)
            if m: sz.append(len(m.group(2).split())*4)
        ins=[it for it in s.items if isinstance(it,Ins)]
        assert len(ins)==len(sz),(len(ins),len(sz))
        for i,z in zip(ins,sz): i.size=z
    def align8(s):
        s.sizes()
        off=0; cand=None; fixed=0; left=0
        for it in s.items:
            if not isinstance(it,Ins): continue
            if it.size==4:
                base=re.sub(r'_e32$','',it.mn)
                lit = re.search(r'0x[0-9a-f]+|\b\d{3,}\b', it.text.split(None,1)[1] if ' ' in it.text else '')
                if base in PROMOTE and not lit: cand=it
            elif off%8==4:
                if cand is not None:
                    cand.text=cand.text.replace(cand.mn, re.sub(r'_e32$','',cand.mn)+'_e64',1); cand.mn=cand.text.split()[0]; cand.size=8
                    off+=4; fixed+=1
                else: left+=1
                cand=None
            else: cand=None
            off+=it.size
        return fixed,left,off

class Regs:
    def __init__(s,n=256): s.free=[True]*n
    def alloc(s,n=1,align=None):
        a=align or (4 if n>=4 else (2 if n>=2 else 1))
        for b in range(0,len(s.free)-n+1,a):
            if all(s.free[b:b+n]):
                for i in range(b,b+n): s.free[i]=False
                return b
        raise RuntimeError(f'out of registers ({n})')
    def take(s,b,n):
        assert all(s.free[b:b+n])
        for i in range(b,b+n): s.free[i]=False
        return b
    def rel(s,b,n=1):
        for i in range(b,b+n):
            assert not s.free[i],('double free',i)
            s.free[i]=True
    def used(s): return len(s.free)-sum(s.free)
```

```python
import subprocess
def build(name, kernels):
    s = '.amdgcn_target "amdgcn-amd-amdhsa--gfx950"\n.text\n'
    for k in kernels:
        kn, body = k[0], k[1]
        s += f'.globl {kn}\n.p2align 8\n.type {kn},@function\n{kn}:\n{body}\ns_endpgm\n'
    s += '.section .rodata,"a"\n'
    for k in kernels:
        kn, body, nv, ao = k[0:4]
        s += f'''.p2align 6
.amdhsa_kernel {kn}
  .amdhsa_next_free_vgpr {nv}
  .amdhsa_next_free_sgpr 96
  .amdhsa_accum_offset {ao}
  .amdhsa_group_segment_fixed_size 0
  .amdhsa_kernarg_size 16
  .amdhsa_user_sgpr_count 2
  .amdhsa_user_sgpr_kernarg_segment_ptr 1
  .amdhsa_system_sgpr_workgroup_id_x 1
.end_amdhsa_kernel
'''
    s += '.amdgpu_metadata\n---\namdhsa.version: [1, 2]\namdhsa.kernels:\n'
    for k in kernels:
        kn, body, nv, ao = k[0:4]
        s += f'''  - .name: {kn}
    .symbol: {kn}.kd
    .kernarg_segment_size: 16
    .kernarg_segment_align: 8
    .group_segment_fixed_size: 0
    .private_segment_fixed_size: 0
    .wavefront_size: 64
    .sgpr_count: 102
    .vgpr_count: {nv}
    .max_flat_workgroup_size: 1024
    .args:
      - {{.name: kernargs, .size: 16, .offset: 0, .value_kind: by_value}}
'''
    s += '...\n.end_amdgpu_metadata\n'
    open(name + '.s', 'w').write(s)
    r = subprocess.run(['clang', '-x', 'assembler', '-target', 'amdgcn-amd-amdhsa', '-mcpu=gfx950', name + '.s', '-o', name + '.co'], capture_output=True, text=True)
    if r.returncode: print(r.stderr[:3000]); raise SystemExit(1)

PRO = '''
s_load_dwordx4 s[4:7], s[0:1], 0
s_waitcnt lgkmcnt(0)
s_mov_b32 s8, s4
s_mov_b32 s9, s5
s_mov_b32 s10, 0x4000000
s_mov_b32 s11, 0x20000
s_mov_b32 s12, s6
s_mov_b32 s13, s7
s_mov_b32 s14, 0x4000000
s_mov_b32 s15, 0x20000
'''
def timed(init, loop_body, iters, lbl):
    return PRO + init + f'''
s_waitcnt vmcnt(0) lgkmcnt(0)
s_barrier
s_memtime s[20:21]
s_mov_b32 s30, {iters}
s_waitcnt lgkmcnt(0)
.p2align 6
L_{lbl}:
{loop_body}
s_sub_u32 s30, s30, 1
s_cmp_lg_u32 s30, 0
s_cbranch_scc1 L_{lbl}
s_nop 15
s_nop 15
s_memtime s[22:23]
s_waitcnt lgkmcnt(0)
s_sub_u32 s22, s22, s20
v_lshrrev_b32 v1, 6, v0
s_lshl_b32 s3, s2, 4
v_add_u32 v1, s3, v1
v_lshlrev_b32 v1, 2, v1
v_mov_b32 v2, s22
v_and_b32 v3, 63, v0
v_cmp_eq_u32 vcc, 0, v3
s_and_saveexec_b64 s[24:25], vcc
buffer_store_dword v2, v1, s[12:15], 0 offen
s_waitcnt vmcnt(0)
'''
```

```python
from mbgen import *
K=[]
def pat(name, addr, step, n=64, flags='', lds=False, pair=0):
    b = PRO + f'''
v_and_b32 v1, 63, v0
v_lshrrev_b32 v2, 6, v0
s_nop 0
v_readfirstlane_b32 s40, v2
{addr}
s_lshr_b32 s44, s2, 6
s_lshl_b32 s44, s44, 18
s_lshl_b32 s45, s40, 7
s_add_u32 s44, s44, s45
s_mov_b32 s41, 0
s_lshl_b32 s42, s2, 4
s_lshl_b32 m0, s40, 12
L_pass_{name}:
s_barrier
s_memtime s[20:21]
s_waitcnt lgkmcnt(0)
'''
    for i in range(n):
        so, off = step(i)
        b += f's_add_u32 s31, s44, {so}\n'
        if lds: b += f'buffer_load_dwordx4 v5, s[8:11], s31 offen {flags} lds\n'
        else: b += f'buffer_load_dwordx4 v[{8+4*(i%16)}:{11+4*(i%16)}], v5, s[8:11], s31 offen offset:{off} {flags}\n'
        b += 's_waitcnt vmcnt(7)\n'
    b += f'''
s_waitcnt vmcnt(0)
s_barrier
s_memtime s[22:23]
s_waitcnt lgkmcnt(0)
s_sub_u32 s22, s22, s20
v_mov_b32 v3, s42
v_mov_b32 v4, s22
buffer_store_dword v4, v3, s[12:15], 0 offen
s_waitcnt vmcnt(0)
s_add_u32 s42, s42, 4
s_add_u32 s41, s41, 1
s_cmp_lt_u32 s41, 3
s_cbranch_scc1 L_pass_{name}
'''
    K.append((name,b,128,128,256,32768))
r16=lambda st: f'v_and_b32 v4, 15, v1\nv_mul_u32_u24 v4, {st}, v4\nv_lshrrev_b32 v5, 4, v1\nv_lshl_add_u32 v5, v5, 4, v4\n'
r8=lambda st: f'v_lshrrev_b32 v4, 3, v1\nv_mul_u32_u24 v4, {st}, v4\nv_and_b32 v5, 7, v1\nv_lshl_add_u32 v5, v5, 4, v4\n'
wsp=lambda i: ((i>>1&3)*65536 + (i>>3)*512, 64*(i&1))
pat('r16_4096', r16(4096), wsp)
pat('r16_4096_sc1', r16(4096), wsp, flags='sc1')
pat('r16_4224', r16(4224), wsp)
pat('r16_1024', r16(1024), lambda i: ((i>>1&3)*16384 + (i>>3)*65536, 64*(i&1)))
pat('r8_4096', r8(4096), lambda i: ((i&7)*32768 + (i>>3)*512, 0))
pat('r8_4096_lds', r8(4096), lambda i: ((i&7)*32768 + (i>>3)*512, 0), lds=True)
pat('r8_4224', r8(4224), lambda i: ((i&7)*32768 + (i>>3)*512, 0))
pat('r8_1024', r8(1024), lambda i: (i*8192, 0))
pat('lin', 'v_lshlrev_b32 v5, 4, v1\n', lambda i: (i*4096, 0))
build('mb21', K)
args=[]
for k in K: args += [k[0],'256',str(k[4]),str(k[5]),'3']
open('mb21.args','w').write(' '.join(args))
```

```python
from mbgen import *
K=[]
def pat(name, addr, step, n=64, flags='', lds=False, pair=0):
    b = PRO + f'''
v_and_b32 v1, 63, v0
v_lshrrev_b32 v2, 6, v0
s_nop 0
v_readfirstlane_b32 s40, v2
{addr}
s_lshr_b32 s44, s2, 6
s_lshl_b32 s44, s44, 18
s_lshl_b32 s45, s40, 7
s_add_u32 s44, s44, s45
s_mov_b32 s41, 0
s_lshl_b32 s42, s2, 4
s_lshl_b32 m0, s40, 12
L_pass_{name}:
s_barrier
s_memtime s[20:21]
s_waitcnt lgkmcnt(0)
'''
    for i in range(n):
        so, off = step(i)
        b += f's_add_u32 s31, s44, {so}\n'
        if lds: b += f'buffer_load_dwordx4 v5, s[8:11], s31 offen {flags} lds\n'
        else: b += f'buffer_load_dwordx4 v[{8+4*(i%16)}:{11+4*(i%16)}], v5, s[8:11], s31 offen offset:{off} {flags}\n'
        b += 's_waitcnt vmcnt(7)\n'
    b += f'''
s_waitcnt vmcnt(0)
s_barrier
s_memtime s[22:23]
s_waitcnt lgkmcnt(0)
s_sub_u32 s22, s22, s20
v_mov_b32 v3, s42
v_mov_b32 v4, s22
buffer_store_dword v4, v3, s[12:15], 0 offen
s_waitcnt vmcnt(0)
s_add_u32 s42, s42, 4
s_add_u32 s41, s41, 1
s_cmp_lt_u32 s41, 3
s_cbranch_scc1 L_pass_{name}
'''
    K.append((name,b,128,128,256,32768))
r16=lambda st: f'v_and_b32 v4, 15, v1\nv_mul_u32_u24 v4, {st}, v4\nv_lshrrev_b32 v5, 4, v1\nv_lshl_add_u32 v5, v5, 4, v4\n'
r8=lambda st: f'v_lshrrev_b32 v4, 3, v1\nv_mul_u32_u24 v4, {st}, v4\nv_and_b32 v5, 7, v1\nv_lshl_add_u32 v5, v5, 4, v4\n'
wsp=lambda i: ((i>>1&3)*65536 + (i>>3)*512, 64*(i&1))
r8x=lambda st: f'v_lshrrev_b32 v4, 3, v1\nv_mul_u32_u24 v4, {st}, v4\nv_and_b32 v5, 7, v1\nv_lshrrev_b32 v6, 4, v1\nv_lshlrev_b32 v6, 1, v6\nv_xor_b32 v5, v5, v6\nv_lshl_add_u32 v5, v5, 4, v4\n'
r8y=lambda st: f'v_lshrrev_b32 v4, 3, v1\nv_mul_u32_u24 v4, {st}, v4\nv_and_b32 v5, 7, v1\nv_lshrrev_b32 v6, 5, v1\nv_lshlrev_b32 v6, 2, v6\nv_xor_b32 v5, v5, v6\nv_lshl_add_u32 v5, v5, 4, v4\n'
win='v_mul_u32_u24 v4, 4682, v1\nv_lshrrev_b32 v4, 16, v4\nv_mul_u32_u24 v6, 14, v4\nv_sub_u32 v5, v1, v6\nv_mul_u32_u24 v4, 3584, v4\nv_lshl_add_u32 v5, v5, 4, v4\n'
q4=lambda st: f'v_lshrrev_b32 v4, 2, v1\nv_mul_u32_u24 v4, {st}, v4\nv_and_b32 v5, 3, v1\nv_lshl_add_u32 v5, v5, 4, v4\n'
p2=lambda st: f'v_lshrrev_b32 v4, 1, v1\nv_mul_u32_u24 v4, {st}, v4\nv_and_b32 v5, 1, v1\nv_lshl_add_u32 v5, v5, 4, v4\n'
pat('r8_1024', r8(1024), lambda i: (i*8192, 0), lds=True)
pat('r8x_1024', r8x(1024), lambda i: (i*8192, 0), lds=True)
pat('r8y_1024', r8y(1024), lambda i: (i*8192, 0), lds=True)
pat('win', win, lambda i: (i*16384, 0), lds=True)
pat('q4_4096', q4(4096), wsp)
pat('p2_4096', p2(4096), lambda i: ((i>>2&1)*131072 + (i>>3)*512, 32*(i&3)))
pat('s32', 'v_lshlrev_b32 v5, 5, v1\n', lambda i: ((i>>1)*4096, 16*(i&1)))
pat('lin', 'v_lshlrev_b32 v5, 4, v1\n', lambda i: (i*4096, 0))
build('mb22', K)
args=[]
for k in K: args += [k[0],'256',str(k[4]),str(k[5]),'3']
open('mb22.args','w').write(' '.join(args))
```
